```python
import torch

def _softmax(x, axis=-1):
    return torch.softmax(x, dim=axis)
def _gelu(x):
    return torch.nn.functional.gelu(x, approximate="tanh")
def _silu(x):
    return torch.nn.functional.silu(x)
def _sigmoid(x):
    return torch.sigmoid(x)
def _layernorm(x, axis=-1, eps=1e-5):
    m = x.mean(dim=axis, keepdim=True)
    v = x.var(dim=axis, keepdim=True, unbiased=False)
    return (x - m) / torch.sqrt(v + eps)
def _scatter_add(tgt, idx, src, axis=0):
    return tgt.clone().index_add_(axis, idx, src)
def _segment_sum(src, seg, n):
    out = torch.zeros((n,) + src.shape[1:], dtype=src.dtype)
    return out.index_add_(0, seg, src)
def _pad(x, pw):
    flat = tuple(v for pair in reversed(pw) for v in pair)
    return torch.nn.functional.pad(x, flat)

kernel_name = 'standalone__batchnorm__sampling'

def setup_inputs():

    _w = (lambda a: (lambda t: t.to(torch.bfloat16) if t.is_floating_point() else t)(torch.as_tensor(a)))
    B, S, C = 1024, 16, 512
    K = 3
    return {
        "x": _w((lambda *s: torch.randn(*s, dtype=torch.bfloat16) * 0.05)(B, S, C)),
        "w": _w((lambda *s: torch.randn(*s, dtype=torch.bfloat16) * 0.05)(K, C, C) * (1.0 / (K * C) ** 0.5)),
        "mean": _w((lambda *s: torch.randn(*s, dtype=torch.bfloat16) * 0.05)(C) * 0.1),
        "var": _w(torch.abs((lambda *s: torch.randn(*s, dtype=torch.bfloat16) * 0.05)(C)) + 0.5),
        "g": _w((lambda *s: torch.randn(*s, dtype=torch.bfloat16) * 0.05)(C) + 1.0),
        "b": _w((lambda *s: torch.randn(*s, dtype=torch.bfloat16) * 0.05)(C) * 0.1),
    }

def reference(x, w, mean, var, g, b):
    K = 3
    P = K // 2
    S = x.shape[1]
    xp = _pad(x, ((0, 0), (P, P), (0, 0)))
    y = sum(torch.einsum('bsc,cd->bsd', xp[:, k:k + S, :], w[k]) for k in range(K))
    inv_std = 1.0 / torch.sqrt(var + 1e-5)
    y = (y - mean) * (g * inv_std) + b
    return _silu(y)
```

```python
import sys, json

KN = "standalone__batchnorm__sampling_kernel"
LOG2E = 1.4426950408889634


def f32bits(x):
    import struct
    return struct.unpack("<I", struct.pack("<f", x))[0]


class I:
    __slots__ = ("text", "kind", "defs", "uses", "tag", "target", "srcc")

    def __init__(self, text, kind, defs=(), uses=(), tag=None, target=None, srcc=()):
        self.text = text; self.kind = kind; self.defs = tuple(defs); self.uses = tuple(uses)
        self.tag = tag; self.target = target; self.srcc = tuple(srcc)


def regs(p, lo, n):
    return [f"{p}{lo+i}" for i in range(n)]


def rng(p, lo, n):
    return f"{p}[{lo}:{lo+n-1}]"


class Gen:
    def __init__(self, cfg):
        self.c = dict(G=8, NB1=6, NB2=6, lead=12, dma_gap=4, pro_w=2, stamps=0, store_aux="", x1_aux="", x2_aux="",
                      w_aux="", wring=11, tail=1, epi_per_step=2, prio=0, bar_lead=14)
        self.c.update(cfg)
        self.G = self.c["G"]
        assert self.G == 8
        self.XSLOT = 16896
        self.WBASE = 4 * self.XSLOT
        self.WRING = self.c["wring"]
        self.WWAVE = self.WRING * 2048
        self.LDS = self.WBASE + 4 * self.WWAVE
        assert self.LDS <= 163840
        self.ACC = 0
        self.XB = 80
        self.BN = 104
        self.V_XR1 = 120
        self.V_WR = 122
        self.V_XD1 = 123
        self.V_WD = 124
        self.V_XD2 = 126
        self.V_XR2 = 127
        self.V_OUT = 123
        self.V_T = [120, 121]
        self.V_PAR = 122
        self.S_P = 4
        self.SRD_X = 20; self.SRD_W = 24; self.SRD_O = 28
        self.S_WAVE = 32; self.S_WB = 33; self.S_X1B = 34; self.S_X2B = 35
        self.S_SO = 36
        self.S_SOX = 37
        self.S_L = 38
        self.S_O4 = 39
        self.S_T = 42
        self.S_DB = 50
        self.S_OB = 51
        self.S_ST = 60
        self.nstamp = 0

    def wfrag(self, kc, k, t):
        f = (kc * 3 + k) * 2 + t
        if f < 64:
            return ("a", 4 * f)
        return ("v", 128 + 4 * (f - 64))

    def acc(self, s, t):
        return self.ACC + (s % 10) * 8 + 4 * t

    def build_mfmas(self):
        G = self.G
        M = []
        frags = []
        self.interval_start = []
        for kc in range(16):
            if kc % 2 == 0:
                self.interval_start.append(len(M))
            fid = {}
            for j in range(G):
                fid[j] = len(frags); frags.append(dict(j=j, kc=kc, ph=1, iv=kc // 2))
            for s in range(G + 1):
                for t in range(2):
                    for k in range(3):
                        j = s + k - 1
                        if 0 <= j < G:
                            M.append(dict(s=s, t=t, k=k, kc=kc, fr=fid[j], j=j))
        self.ph1_end = len(M)
        sub = []
        for j in range(G, 16):
            taps = [k for k in (2, 1, 0) if 0 <= j + 1 - k < 16]
            sub.append((j, taps, 0))
        if self.c["tail"]:
            sub = [x for x in sub if x[0] < 14]
            sub += [(14, [2], 0), (14, [1], 0), (15, [2], 0), (14, [0], 0), (15, [1], 1)]
        seen = set()
        self.sub_start = []
        for (j, taps, split) in sub:
            if j not in seen:
                seen.add(j); self.interval_start.append(len(M))
            self.sub_start.append((j, taps, len(M)))
            if not split:
                for kp in range(8):
                    f = []
                    for kc in (2 * kp, 2 * kp + 1):
                        f.append(len(frags)); frags.append(dict(j=j, kc=kc, ph=2, iv=j))
                    for k in taps:
                        for t in range(2):
                            for u in range(2):
                                M.append(dict(s=j + 1 - k, t=t, k=k, kc=2 * kp + u, fr=f[u], j=j))
            else:
                f = []
                for kc in range(16):
                    f.append(len(frags)); frags.append(dict(j=j, kc=kc, ph=2, iv=j, hold=kc))
                for t in range(2):
                    for k in taps:
                        for kc in range(16):
                            M.append(dict(s=j + 1 - k, t=t, k=k, kc=kc, fr=f[kc], j=j))
        assert len(M) == 1472, len(M)
        self.M = M; self.frags = frags
        for i, m in enumerate(M):
            fr = frags[m["fr"]]
            fr.setdefault("first", i); fr["last"] = i
        self.acc_first = {}; self.acc_last = {}
        for i, m in enumerate(M):
            self.acc_first.setdefault((m["s"], m["t"]), i); self.acc_last[(m["s"], m["t"])] = i

    def gap_cost(self, lst):
        t = 4
        nv = [x for x in lst if x.kind not in ("valu", "trans")]
        vv = [x for x in lst if x.kind in ("valu", "trans")]
        for x in nv:
            t += 4
        for x in vv:
            t = max(t, 8) + (8 if x.kind == "trans" else 4)
        return t

    def place(self, ins, lo, hi=None, force=False):
        g = max(lo, 0)
        n = len(self.M)
        while g < n - 1:
            if force or self.gap_cost(self.gaps[g] + [ins]) <= 16:
                break
            g += 1
        if hi is not None and g > hi:
            raise Exception(f"cannot place {ins.text} in [{lo},{hi}]")
        g = min(g, n - 1)
        self.gaps[g].append(ins)
        return g

    def stamp(self):
        r = self.S_ST + 2 * self.nstamp
        self.nstamp += 1
        assert r + 1 < 100
        return I(f"s_memtime s[{r}:{r+1}]", "smem")

    def w_unit(self, u):
        kc, kk = divmod(u, 3)
        k = (1, 2, 0)[kk]
        aux = self.c["w_aux"]
        pos = (u % self.WRING) * 2048
        return [
            I(f"s_add_u32 m0, s{self.S_WB}, {pos}", "salu", defs=["m0"]),
            I(f"s_mov_b32 s{self.S_SO}, {k*524288 + kc*32768}", "salu", defs=[f"s{self.S_SO}"]),
            I(f"buffer_load_dwordx4 v{self.V_WD}, s[{self.SRD_W}:{self.SRD_W+3}], s{self.S_SO} offen {aux} lds", "dma",
              uses=["m0", f"v{self.V_WD}"], tag=("W", u, 0)),
            I(f"buffer_load_dwordx4 v{self.V_WD+1}, s[{self.SRD_W}:{self.SRD_W+3}], s{self.S_SO} offen offset:1024 {aux} lds", "dma",
              uses=["m0", f"v{self.V_WD+1}"], tag=("W", u, 1)),
        ]

    def x_slot(self, p):
        slot = (p % 4) * self.XSLOT
        out = []
        if p < 8:
            aux = self.c["x1_aux"]
            out.append(I(f"s_add_u32 m0, s{self.S_X1B}, {slot}", "salu", defs=["m0"]))
            out.append(I(f"s_mov_b32 s{self.S_SOX}, {p*128}", "salu", defs=[f"s{self.S_SOX}"]))
            for n in range(4):
                off = f"offset:{n*1024} " if n else ""
                out.append(I(f"buffer_load_dwordx4 v{self.V_XD1}, s[{self.SRD_X}:{self.SRD_X+3}], s{self.S_SOX} offen {off}{aux} lds",
                             "dma", uses=["m0", f"v{self.V_XD1}"], tag=("X", p, n)))
        else:
            aux = self.c["x2_aux"]
            out.append(I(f"s_add_u32 m0, s{self.S_X2B}, {slot}", "salu", defs=["m0"]))
            for n in range(4):
                off = f"offset:{n*1056} " if n else ""
                out.append(I(f"s_mov_b32 s{self.S_SOX}, {n*16384 - n*1056 + p*1024}", "salu", defs=[f"s{self.S_SOX}"]))
                out.append(I(f"buffer_load_dwordx4 v{self.V_XD2}, s[{self.SRD_X}:{self.SRD_X+3}], s{self.S_SOX} offen {off}{aux} lds",
                             "dma", uses=["m0", f"v{self.V_XD2}"], tag=("X", p, n)))
        return out

    def w_reads(self, u):
        kc, kk = divmod(u, 3)
        k = (1, 2, 0)[kk]
        pos = (u % self.WRING) * 2048
        out = []
        for t in range(2):
            p, r = self.wfrag(kc, k, t)
            for m in range(2):
                out.append(I(f"ds_read_b64_tr_b16 {rng(p, r+2*m, 2)}, v{self.V_WR} offset:{pos + 256*m + 8*t}", "ds",
                             defs=regs(p, r + 2 * m, 2), uses=[f"v{self.V_WR}"], tag=("WR", u, t, m)))
        return out

    def x_read(self, fi):
        fr = self.frags[fi]
        b = fr["buf"]
        slot = (fr["iv"] % 4) * self.XSLOT
        if fr["ph"] == 1:
            a = self.V_XR1 + (fr["kc"] & 1); off = slot + fr["j"] * 1024
        else:
            a = self.V_XR2; off = slot + fr["kc"] * 64
        return I(f"ds_read_b128 {rng('v', b, 4)}, v{a} offset:{off}", "ds", defs=regs("v", b, 4), uses=[f"v{a}"], tag=("XR", fi))

    def epi_pairs(self, s, vals, temps):
        groups = []
        L = f"s{self.S_L}"
        for pr in vals:
            a = [self.acc(s, t) + e for (t, e) in pr]
            sc = [self.BN + 4 * t + e for (t, e) in pr]
            sh = [self.BN + 8 + 4 * t + e for (t, e) in pr]
            T = temps[:len(pr)]
            groups.append([I(f"v_fma_f32 v{a[i]}, v{a[i]}, v{sc[i]}, v{sh[i]}", "valu", defs=[f"v{a[i]}"], uses=[f"v{a[i]}", f"v{sc[i]}", f"v{sh[i]}"]) for i in range(len(pr))])
            groups.append([I(f"v_exp_f32_e64 v{T[i]}, -v{a[i]}", "trans", defs=[f"v{T[i]}"], uses=[f"v{a[i]}"]) for i in range(len(pr))])
            groups.append([I(f"v_fma_f32 v{T[i]}, v{T[i]}, {L}, {L}", "valu", defs=[f"v{T[i]}"], uses=[f"v{T[i]}"]) for i in range(len(pr))])
            groups.append([I(f"v_rcp_f32_e32 v{T[i]}, v{T[i]}", "trans", defs=[f"v{T[i]}"], uses=[f"v{T[i]}"]) for i in range(len(pr))])
            groups.append([I(f"v_mul_f32_e32 v{a[i]}, v{a[i]}, v{T[i]}", "valu", defs=[f"v{a[i]}"], uses=[f"v{a[i]}", f"v{T[i]}"]) for i in range(len(pr))])
            cv = []
            for i in range(0, len(pr), 2):
                (t, e) = pr[i]
                d = self.acc(s, 0) + 2 * t + e // 2
                cv.append(I(f"v_cvt_pk_bf16_f32 v{d}, v{a[i]}, v{a[i+1]}", "valu", defs=[f"v{d}"], uses=[f"v{a[i]}", f"v{a[i+1]}"]))
            groups.append(cv)
        return groups

    def store(self, s):
        d = self.acc(s, 0)
        so = "0" if s < 4 else f"s{self.S_O4 + (s >> 2) - 1}"
        off = f"offset:{(s & 3) * 1024} " if s & 3 else ""
        return I(f"buffer_store_dwordx4 {rng('v', d, 4)}, v{self.V_OUT}, s[{self.SRD_O}:{self.SRD_O+3}], {so} offen {off}{self.c['store_aux']}",
                 "store", uses=regs("v", d, 4) + [f"v{self.V_OUT}"], tag=("ST", s))

    def schedule(self):
        c = self.c
        M = self.M; n = len(M)
        self.gaps = [[] for _ in range(n)]
        pro = []
        self.pro = pro
        lead = c["lead"]
        ring = 0
        last_user = {}
        holdregs = None
        for fi, fr in enumerate(self.frags):
            if "hold" in fr:
                pool = [self.ACC + 8 * q + 4 * h for q in (6, 7, 8, 9, 0, 1, 2) for h in range(2)] + [self.XB + 4 * q for q in range(6)]
                fr["buf"] = pool[fr["hold"]]
                if fr["buf"] < self.XB:
                    fr["prev_last"] = None; fr["accset"] = (fr["buf"] - self.ACC) // 8
                    continue
            else:
                nb = c["NB1"] if fr["ph"] == 1 else c["NB2"]
                fr["buf"] = self.XB + 4 * (ring % 6)
                ring += 1
            fr["prev_last"] = last_user.get(fr["buf"])
            last_user[fr["buf"]] = fr["last"]
        bar_gap = {}
        for p in range(1, 16):
            g = self.interval_start[p] - c["bar_lead"]
            w = I("WAITVM", "wait", target=("X", p, 3))
            b = I("s_barrier", "bar", tag=("BAR", p))
            while self.gap_cost(self.gaps[g] + [w, b]) > 16:
                g += 1
            self.gaps[g] += [w, b]
            bar_gap[p] = g
        self.bar_gap = bar_gap
        for fi, fr in enumerate(self.frags):
            if "hold" in fr:
                if fr["hold"] % 4 == 0:
                    self.gaps[fr["first"] - 1].insert(0, I("WAITLGKM", "wait", target=("XR", fi + 3)))
            elif fr["ph"] == 2:
                if fr["kc"] % 2 == 0:
                    self.gaps[fr["first"] - 1].insert(0, I("WAITLGKM", "wait", target=("XR", fi + 1)))
            elif fr["first"] > 0:
                self.gaps[fr["first"] - 1].insert(0, I("WAITLGKM", "wait", target=("XR", fi)))
        self.epi_done = {}
        tail = []
        self.tail = tail
        g = self.ph1_end + 2
        g0 = self.ph1_end
        rb = self.rebuild_out()
        for ins in rb:
            g0 = self.place(ins, g0) + 1
        g = g0
        steps = [x[2] for x in self.sub_start]
        pace = c["epi_per_step"]
        for s in range(16):
            lo = max(g, self.acc_last[(s, 0)] + 9)
            if s < 13 and pace:
                lo = max(lo, self.ph1_end + (s * 96) // pace + 2)
            if s == 15:
                break
            for t in range(2):
                lo = max(lo, self.acc_last[(s, t)] + 9)
                for grp in self.epi_pairs(s, [[(t, 0), (t, 1)], [(t, 2), (t, 3)]], self.V_T):
                    mx = lo
                    for ins in grp:
                        mx = self.place(ins, lo); lo = mx
                    lo = mx + 1
            gs = self.place(self.store(s), lo)
            self.epi_done[s] = gs
            g = gs
        s = 15
        lo = max(g, self.acc_last[(s, 0)] + 9)
        T4 = [self.XB + i for i in range(4)] if not c["tail"] else [self.acc(13, 0) + i for i in range(8)]
        if c["tail"]:
            lo = max(lo, self.epi_done[13] + 2)
            for grp in self.epi_pairs(s, [[(0, 0), (0, 1), (0, 2), (0, 3)]], T4[:4]):
                for ins in grp:
                    if lo < n - 1:
                        lo = self.place(ins, lo)
                        if lo == n - 1:
                            self.gaps[n - 1].remove(ins); tail.append(ins)
                    else:
                        tail.append(ins)
                if lo < n - 1:
                    lo += 1
            tail.append(I("PADMFMA", "pad"))
            for grp in self.epi_pairs(s, [[(1, 0), (1, 1), (1, 2), (1, 3)]], T4[4:8]):
                tail += grp
        else:
            tail.append(I("PADMFMA", "pad"))
            T8 = [self.XB + i for i in range(8)]
            for grp in self.epi_pairs(s, [[(t, e) for t in range(2) for e in range(4)]], T8):
                tail += grp
        tail.append(self.store(s))
        for s in range(10, 16):
            assert self.epi_done[s - 10] + 1 < min(self.acc_first[(s, 0)], self.acc_first[(s, 1)]), (s, self.epi_done[s - 10], self.acc_first[(s, 0)])
        cur = 0
        for fi, fr in enumerate(self.frags):
            rd = self.x_read(fi)
            lo = fr["first"] - lead
            if fr["prev_last"] is not None:
                lo = max(lo, fr["prev_last"])
            if "accset" in fr:
                q = fr["accset"]
                prev = q + 10 if q + 10 in self.epi_done else q
                lo = max(fr["first"] - 36, self.epi_done[prev] + 2)
            if fr["iv"] in bar_gap:
                lo = max(lo, bar_gap[fr["iv"]] + 1)
            if lo < 0:
                pro.append(rd); continue
            lo = max(lo, cur)
            cur = self.place(rd, lo, fr["first"] - 4 - (fr.get("hold", 0) % 4) - (fr["kc"] & 1 if fr["ph"] == 2 else 0))
            fr["rdgap"] = cur
        wr_gap = {}
        kc_start = [self.interval_start[k // 2] + (46 if k & 1 else 0) for k in range(16)]
        for u in range(48):
            kc, kk = divmod(u, 3)
            rds = self.w_reads(u)
            if kc == 0:
                continue
            lo = kc_start[kc - 1] + c.get("wr_off", 8) + 10 * kk
            lo = self.place(I("WAITVM", "wait", target=("W", u, 1)), lo)
            for r in rds:
                lo = self.place(r, lo, kc_start[kc] - 4)
                lo += c.get("wr_step", 1)
            wr_gap[u] = lo
        for kc in range(1, 16):
            self.gaps[kc_start[kc] - 1].insert(0, I("WAITLGKM", "wait", target=("WR", kc * 3 + 2, 1, 1)))
        todo = []
        npw = c["pro_w"]
        for u in range(3 * npw, 48):
            kc = u // 3
            need = kc_start[kc - 1] + c.get("wr_off", 8) + 10 * (u % 3)
            if u >= self.WRING:
                v = u - self.WRING
                if v >= 3:
                    free = min(fr["first"] for fr in self.frags if fr["ph"] == 1 and fr.get("rdgap", -1) >= wr_gap[v])
                    free = min(free, kc_start[v // 3])
                else:
                    free = 0
            else:
                free = 0
            todo.append((need, free, self.w_unit(u), ("W", u)))
        npx = c.get("pro_x", 1)
        for p in range(npx, 16):
            need = bar_gap[p]
            free = bar_gap[p - 2] + 1 if p >= 4 else 0
            todo.append((need, free, self.x_slot(p), ("X", p)))
        todo.sort(key=lambda x: x[0])
        cur = 0
        self.dma_gap = {}
        pend = list(todo)
        while pend:
            cand = [x for x in pend if x[1] <= cur]
            if not cand:
                cur = min(x[1] for x in pend); continue
            it = cand[0]; pend.remove(it)
            for ins in it[2]:
                cur = self.place(ins, cur)
                if ins.kind == "dma":
                    self.dma_gap[ins.tag] = cur
                    cur += c["dma_gap"]
            assert cur - c["dma_gap"] < it[0] - 4, (it[3], cur, it[0])
        self.place_bn(kc_start)
        P = []
        for u in range(3):
            P += self.w_unit(u)
        P += self.x_slot(0)
        for u in range(3, 3 * npw):
            P += self.w_unit(u)
        for p in range(1, npx):
            P += self.x_slot(p)
        if c["stamps"]: P.append(self.stamp())
        P.append(I("WAITVM", "wait", target=("W", 0, 1)))
        P += self.w_reads(0)
        P.append(I("WAITVM", "wait", target=("W", 1, 1)))
        P += self.w_reads(1)
        P.append(I("WAITVM", "wait", target=("W", 2, 1)))
        P += self.w_reads(2)
        P.append(I("WAITVM", "wait", target=("X", 0, 3)))
        if c["stamps"]: P.append(self.stamp())
        P.append(I("s_barrier", "bar", tag=("BAR", 0)))
        P += pro
        P.append(I("WAITLGKM", "wait", target=("XR", 0)))
        self.pro = P
        if c["stamps"]:
            P.append(self.stamp())
            for p in range(1, 16):
                self.gaps[self.interval_start[p] - 1].append(self.stamp())

    def rebuild_out(self):
        o = self.V_OUT; t = self.V_T[0]
        return [
            I(f"v_mbcnt_lo_u32_b32 v{t}, -1, 0", "valu", defs=[f"v{t}"]),
            I(f"v_mbcnt_hi_u32_b32 v{t}, -1, v{t}", "valu", defs=[f"v{t}"], uses=[f"v{t}"]),
            I(f"v_and_b32_e32 v{o}, 15, v{t}", "valu", defs=[f"v{o}"], uses=[f"v{t}"]),
            I(f"v_lshlrev_b32_e32 v{o}, 14, v{o}", "valu", defs=[f"v{o}"], uses=[f"v{o}"]),
            I(f"v_and_b32_e32 v{t}, 48, v{t}", "valu", defs=[f"v{t}"], uses=[f"v{t}"]),
            I(f"v_add3_u32 v{o}, v{o}, v{t}, s{self.S_T+7}", "valu", defs=[f"v{o}"], uses=[f"v{o}", f"v{t}"]),
        ]

    def place_bn(self, kc_start):
        T = self.ACC + 72
        A = self.BN + 15
        U = self.BN + 14
        sP = self.S_P
        g = kc_start[1] + 2
        seq = [
            I(f"v_mbcnt_lo_u32_b32 v{A}, -1, 0", "valu", defs=[f"v{A}"]),
            I(f"v_mbcnt_hi_u32_b32 v{A}, -1, v{A}", "valu", defs=[f"v{A}"], uses=[f"v{A}"]),
            I(f"v_and_b32_e32 v{A}, 48, v{A}", "valu", defs=[f"v{A}"], uses=[f"v{A}"]),
            I(f"v_add_u32_e32 v{A}, s{self.S_DB}, v{A}", "valu", defs=[f"v{A}"], uses=[f"v{A}"]),
            I(f"global_load_dwordx4 {rng('v', T, 4)}, v{A}, s[{sP+6}:{sP+7}]", "vload", defs=regs("v", T, 4), uses=[f"v{A}"], tag=("PV",)),
            I(f"global_load_dwordx4 {rng('v', T+4, 4)}, v{A}, s[{sP+8}:{sP+9}]", "vload", defs=regs("v", T + 4, 4), uses=[f"v{A}"], tag=("PG",)),
        ]
        for ins in seq:
            g = self.place(ins, g) + 1
        g = max(g, kc_start[4])
        g = self.place(I("WAITVM", "wait", target=("PG",)), g) + 1
        k1 = f32bits(1.0 / (LOG2E * LOG2E)); k2 = f32bits(1e-5 / (LOG2E * LOG2E))
        sK = self.S_T + 5
        g = self.place(I(f"s_mov_b32 s{sK}, {k1:#x}", "salu", defs=[f"s{sK}"]), g) + 1

        def unpack(d, src, i):
            if i & 1:
                return I(f"v_and_b32_e32 v{d}, 0xffff0000, v{src + i // 2}", "valu", defs=[f"v{d}"], uses=[f"v{src + i // 2}"])
            return I(f"v_lshlrev_b32_e32 v{d}, 16, v{src + i // 2}", "valu", defs=[f"v{d}"], uses=[f"v{src + i // 2}"])
        for i in range(8):
            d = self.BN + i
            for ins in [unpack(d, T, i),
                        I(f"v_mul_f32_e32 v{d}, s{sK}, v{d}", "valu", defs=[f"v{d}"], uses=[f"v{d}"]),
                        I(f"v_add_f32_e32 v{d}, {k2:#x}, v{d}", "valu", defs=[f"v{d}"], uses=[f"v{d}"]),
                        I(f"v_rsq_f32_e32 v{d}, v{d}", "trans", defs=[f"v{d}"], uses=[f"v{d}"]),
                        unpack(U, T + 4, i),
                        I(f"v_mul_f32_e32 v{d}, v{d}, v{U}", "valu", defs=[f"v{d}"], uses=[f"v{d}", f"v{U}"])]:
                g = self.place(ins, g) + 1
        for ins in [
            I(f"global_load_dwordx4 {rng('v', T, 4)}, v{A}, s[{sP+4}:{sP+5}]", "vload", defs=regs("v", T, 4), uses=[f"v{A}"], tag=("PM",)),
            I(f"global_load_dwordx4 {rng('v', T+4, 4)}, v{A}, s[{sP+10}:{sP+11}]", "vload", defs=regs("v", T + 4, 4), uses=[f"v{A}"], tag=("PB",)),
        ]:
            g = self.place(ins, g) + 1
        g = max(g + 100, kc_start[9])
        g = self.place(I("WAITVM", "wait", target=("PB",)), g) + 1
        for i in range(8):
            d = self.BN + 8 + i
            u = U if i < 6 else T + (i - 6)
            for ins in [unpack(d, T + 4, i),
                        I(f"v_mul_f32_e32 v{d}, s{self.S_L}, v{d}", "valu", defs=[f"v{d}"], uses=[f"v{d}"]),
                        unpack(u, T, i),
                        I(f"v_fma_f32 v{d}, -v{u}, v{self.BN+i}, v{d}", "valu", defs=[f"v{d}"], uses=[f"v{u}", f"v{self.BN+i}", f"v{d}"])]:
                g = self.place(ins, g) + 1
        assert g < self.ph1_end - 2, g

    def entry(self):
        c = self.c
        E = []
        e = lambda t, k="salu", d=(), u=(): E.append(I(t, k, defs=d, uses=u))
        if c["stamps"]:
            E.append(self.stamp())
            E.append(I("s_memrealtime s[56:57]", "smem"))
        e("s_cmp_ge_u32 s2, 256")
        e("s_cbranch_scc1 L_end")
        e(f"s_load_dwordx16 s[{self.S_P}:{self.S_P+15}], s[0:1], 0", "smem")
        T = self.S_T
        e("v_lshrrev_b32_e32 v1, 6, v0", "valu", ["v1"], ["v0"])
        e("v_and_b32_e32 v0, 63, v0", "valu", ["v0"], ["v0"])
        e(f"v_readfirstlane_b32 s{self.S_WAVE}, v1", "valu", [f"s{self.S_WAVE}"], ["v1"])
        e(f"s_and_b32 s{T}, s2, 7")
        e(f"s_lshl_b32 s{T}, s{T}, 3")
        e(f"s_lshr_b32 s{T+1}, s2, 5")
        e(f"s_add_u32 s{T}, s{T}, s{T+1}")
        e(f"s_lshl_b32 s{self.S_OB}, s{T}, 18")
        e(f"s_lshr_b32 s{T+1}, s2, 3")
        e(f"s_and_b32 s{T+1}, s{T+1}, 3")
        e(f"s_lshl_b32 s{T+1}, s{T+1}, 8")
        e(f"s_lshl_b32 s{T+2}, s{self.S_WAVE}, 6")
        e(f"s_add_u32 s{self.S_DB}, s{T+1}, s{T+2}")
        e(f"s_add_u32 s{T+7}, s{self.S_DB}, s{self.S_OB}")
        wd = self.V_WD
        e(f"v_lshrrev_b32_e32 v1, 2, v0", "valu", ["v1"], ["v0"])
        e(f"v_lshlrev_b32_e32 v1, 10, v1", "valu", ["v1"], ["v1"])
        e(f"v_and_b32_e32 v2, 3, v0", "valu", ["v2"], ["v0"])
        e(f"v_lshlrev_b32_e32 v2, 4, v2", "valu", ["v2"], ["v2"])
        e(f"v_add3_u32 v{wd}, v1, v2, s{self.S_DB}", "valu", [f"v{wd}"], ["v1", "v2"])
        e(f"v_add_u32_e32 v{wd+1}, {16384-1024}, v{wd}", "valu", [f"v{wd+1}"], [f"v{wd}"])
        e(f"s_mul_i32 s{self.S_WB}, s{self.S_WAVE}, {self.WWAVE}")
        e(f"s_add_u32 s{self.S_WB}, s{self.S_WB}, {self.WBASE}")
        xd = self.V_XD1
        e(f"s_and_b32 s{T+3}, s{self.S_WAVE}, 1")
        e(f"s_lshr_b32 s{T+4}, s{self.S_WAVE}, 1")
        e(f"s_lshl_b32 s{T+5}, s{T+3}, 13")
        e(f"s_lshl_b32 s{T+6}, s{T+4}, 12")
        e(f"s_add_u32 s{self.S_X1B}, s{T+5}, s{T+6}")
        e(f"s_lshl_b32 s{T+5}, s{T+3}, 3")
        e(f"v_lshrrev_b32_e32 v1, 3, v0", "valu", ["v1"], ["v0"])
        e(f"v_add_u32_e32 v1, s{T+5}, v1", "valu", ["v1"], ["v1"])
        e(f"v_lshrrev_b32_e32 v2, 1, v1", "valu", ["v2"], ["v1"])
        e(f"v_xor_b32_e32 v2, v2, v0", "valu", ["v2"], ["v2", "v0"])
        e(f"v_and_b32_e32 v2, 7, v2", "valu", ["v2"], ["v2"])
        e(f"v_lshlrev_b32_e32 v2, 4, v2", "valu", ["v2"], ["v2"])
        e(f"v_lshlrev_b32_e32 v1, 14, v1", "valu", ["v1"], ["v1"])
        e(f"s_add_u32 s{T+6}, s{T+6}, s{self.S_OB}")
        e(f"v_add3_u32 v{xd}, v1, v2, s{T+6}", "valu", [f"v{xd}"], ["v1", "v2"])
        self.entry_split = len(E)
        e(f"s_lshl_b32 s{T+5}, s{self.S_WAVE}, 16")
        e(f"s_add_u32 s{T+5}, s{T+5}, s{self.S_OB}")
        e(f"v_lshlrev_b32_e32 v1, 4, v0", "valu", ["v1"], ["v0"])
        e(f"v_add_u32_e32 v{self.V_XD2}, s{T+5}, v1", "valu", [f"v{self.V_XD2}"], ["v1"])
        e(f"s_mul_i32 s{self.S_X2B}, s{self.S_WAVE}, {4*1056}")
        e(f"v_and_b32_e32 v1, 15, v0", "valu", ["v1"], ["v0"])
        e(f"v_lshrrev_b32_e32 v2, 4, v0", "valu", ["v2"], ["v0"])
        e(f"v_mul_u32_u24_e32 v3, 1056, v1", "valu", ["v3"], ["v1"])
        e(f"v_lshl_add_u32 v{self.V_XR2}, v2, 4, v3", "valu", [f"v{self.V_XR2}"], ["v2", "v3"])
        e(f"v_lshrrev_b32_e32 v3, 1, v1", "valu", ["v3"], ["v1"])
        e(f"v_xor_b32_e32 v3, v3, v2", "valu", ["v3"], ["v3", "v2"])
        e(f"v_lshlrev_b32_e32 v3, 4, v3", "valu", ["v3"], ["v3"])
        e(f"v_and_b32_e32 v4, 7, v1", "valu", ["v4"], ["v1"])
        e(f"v_lshl_add_u32 v3, v4, 7, v3", "valu", ["v3"], ["v4", "v3"])
        e(f"v_lshrrev_b32_e32 v4, 3, v1", "valu", ["v4"], ["v1"])
        e(f"v_lshl_add_u32 v{self.V_XR1}, v4, 13, v3", "valu", [f"v{self.V_XR1}"], ["v4", "v3"])
        e(f"v_xor_b32_e32 v{self.V_XR1+1}, 64, v{self.V_XR1}", "valu", [f"v{self.V_XR1+1}"], [f"v{self.V_XR1}"])
        e(f"v_and_b32_e32 v3, 15, v0", "valu", ["v3"], ["v0"])
        e(f"v_lshlrev_b32_e32 v3, 4, v3", "valu", ["v3"], ["v3"])
        e(f"v_lshl_add_u32 v3, v2, 9, v3", "valu", ["v3"], ["v2", "v3"])
        e(f"v_add_u32_e32 v{self.V_WR}, s{self.S_WB}, v3", "valu", [f"v{self.V_WR}"], ["v3"])
        e(f"s_mov_b32 s{self.S_L}, {f32bits(LOG2E):#x}")
        for i in range(3):
            e(f"s_movk_i32 s{self.S_O4+i}, {4096*(i+1)}")
        sP = self.S_P
        e(f"s_mov_b32 s{self.SRD_O}, s{sP+12}")
        e(f"s_and_b32 s{self.SRD_O+1}, s{sP+13}, 0xffff")
        e(f"s_mov_b32 s{self.SRD_O+2}, 0x1000000")
        e(f"s_mov_b32 s{self.SRD_O+3}, 0x20000")
        late = E[self.entry_split:]
        E = E[:self.entry_split]
        E.append(I(f"s_mov_b32 s{self.SRD_W+2}, 0x180000", "salu"))
        E.append(I(f"s_mov_b32 s{self.SRD_W+3}, 0x20000", "salu"))
        E.append(I(f"s_mov_b32 s{self.SRD_X+2}, 0x1000000", "salu"))
        E.append(I(f"s_mov_b32 s{self.SRD_X+3}, 0x20000", "salu"))
        E.append(I("s_waitcnt lgkmcnt(0)", "rawwait"))
        if c["stamps"]:
            E.append(self.stamp())
        E.append(I(f"s_mov_b32 s{self.SRD_W}, s{sP+2}", "salu"))
        E.append(I(f"s_and_b32 s{self.SRD_W+1}, s{sP+3}, 0xffff", "salu"))
        E.append(I(f"s_mov_b32 s{self.SRD_X}, s{sP}", "salu"))
        E.append(I(f"s_and_b32 s{self.SRD_X+1}, s{sP+1}, 0xffff", "salu"))
        return E, late

    def linearise(self):
        c = self.c
        E, late = self.entry()
        self.build_mfmas()
        self.schedule()
        P = self.pro
        k = max(i for i, x in enumerate(P) if x.kind == "dma") + 1
        S = E + P[:k] + late + P[k:]
        for i, m in enumerate(self.M):
            s, t = m["s"], m["t"]
            a = self.acc(s, t)
            wp, wr = self.wfrag(m["kc"], m["k"], t)
            xb = self.frags[m["fr"]]["buf"]
            first = self.acc_first[(s, t)] == i
            cc = "0" if first else rng("v", a, 4)
            S.append(I(f"v_mfma_f32_16x16x32_bf16 {rng('v', a, 4)}, {rng(wp, wr, 4)}, {rng('v', xb, 4)}, {cc}", "mfma",
                       defs=regs("v", a, 4), uses=regs(wp, wr, 4) + regs("v", xb, 4) + ([] if first else regs("v", a, 4)),
                       srcc=[] if first else regs("v", a, 4)))
            gp = self.gaps[i]
            S += [x for x in gp if x.kind not in ("valu", "trans")] + [x for x in gp if x.kind in ("valu", "trans")]
        S += self.tail
        out = []
        vm = []
        vm_done = 0
        lg = []; lg_done = 0
        for x in S:
            if x.kind in ("dma", "store", "vload"):
                vm.append(x.tag)
            elif x.kind == "ds":
                lg.append(x.tag)
            if x.text == "WAITVM":
                idx = vm.index(x.target) + 1
                if idx <= vm_done:
                    continue
                nn = len(vm) - idx
                assert nn <= 63
                vm_done = idx
                out.append(I(f"s_waitcnt vmcnt({nn})", "wait", tag=("vm", x.target)))
            elif x.text == "WAITLGKM":
                idx = lg.index(x.target) + 1
                if idx <= lg_done:
                    continue
                nn = len(lg) - idx
                if nn > 15:
                    nn = 15; idx = len(lg) - 15
                lg_done = idx
                out.append(I(f"s_waitcnt lgkmcnt({nn})", "wait", tag=("lg", x.target)))
            elif x.text == "PADMFMA":
                out.append(I("s_nop 7", "nop"))
            else:
                out.append(x)
        self.S = out
        return out

    def check(self):
        S = self.S
        pend = {}
        lg = []; vm = []
        lg_done = vm_done = 0
        last_def = {}
        last_srcc = {}
        last_store = {}
        pos = 0
        import re
        wr_idx = {}; xr_idx = {}
        bar_seen = {}
        vm_idx = {}
        for x in S:
            st = 1
            if x.kind == "nop":
                st = int(x.text.split()[1]) + 1
            if x.kind == "wait":
                mm = re.match(r"s_waitcnt (\w+)\((\d+)\)", x.text)
                if mm.group(1) == "vmcnt": vm_done = max(vm_done, len(vm) - int(mm.group(2)))
                else: lg_done = max(lg_done, len(lg) - int(mm.group(2)))
            for r in x.uses + x.defs:
                if r in pend:
                    q, i = pend[r]
                    if (q == "lg" and i > lg_done) or (q == "vm" and i > vm_done):
                        raise Exception(f"use of pending {r} in {x.text}")
                    del pend[r]
            for r in x.uses:
                if r in last_def:
                    p, k = last_def[r]
                    d = pos - p - 1
                    need = 0
                    if k == "mfma":
                        if x.kind == "mfma": need = 0 if r in x.srcc else 8
                        else: need = 8
                    elif k in ("valu", "trans"):
                        if x.kind == "mfma": need = 2
                        elif k == "trans" and x.kind in ("valu",): need = 1
                        if r.startswith("s") and x.kind in ("dma", "store", "vload"): need = 5
                        if "readfirstlane" in x.text: need = 1
                    elif k == "salu" and r == "m0": need = 1
                    if d < need:
                        raise Exception(f"hazard RAW {r}: {k} -> {x.text} dist {d} < {need}")
            for r in x.defs:
                if r in last_def and last_def[r][1] == "mfma" and not (x.kind == "mfma" and r in x.srcc):
                    d = pos - last_def[r][0] - 1
                    if d < 8: raise Exception(f"hazard WAW {r}: mfma -> {x.text} dist {d}")
                if r in last_srcc and x.kind in ("valu", "trans") and pos - last_srcc[r] - 1 < 3:
                    raise Exception(f"hazard WAR srcc {r}: {x.text}")
                if r in last_store and pos - last_store[r] - 1 < 2:
                    raise Exception(f"hazard WAR store {r}: {x.text}")
            if x.kind == "ds":
                lg.append(x.tag)
                for r in x.defs: pend[r] = ("lg", len(lg))
                if x.tag[0] == "WR":
                    wr_idx[x.tag[1]] = len(lg)
                    assert vm_idx[("W", x.tag[1], 1)] <= vm_done, ("W not landed", x.tag)
                else:
                    fr = self.frags[x.tag[1]]
                    xr_idx[fr["iv"]] = len(lg)
                    assert fr["iv"] in bar_seen, ("X read before barrier", x.tag)
            elif x.kind in ("dma", "store", "vload"):
                vm.append(x.tag); vm_idx[x.tag] = len(vm)
                for r in x.defs: pend[r] = ("vm", len(vm))
                if x.kind == "dma" and x.tag[0] == "W" and x.tag[1] >= self.WRING:
                    assert wr_idx[x.tag[1] - self.WRING] <= lg_done, ("W slot overwritten early", x.tag)
                if x.kind == "dma" and x.tag[0] == "X" and x.tag[1] >= 4:
                    p = x.tag[1]
                    ok = any(lgd >= xr_final[p - 4] for (q, lgd) in bar_seen.items())
                    assert ok, ("X slot overwritten early", x.tag)
                if x.kind == "store":
                    for r in x.uses: last_store[r] = pos
            elif x.kind == "bar":
                p = x.tag[1]
                assert vm_idx[("X", p, 3)] <= vm_done, ("barrier before X landed", p)
                bar_seen[p] = lg_done
                if p == 0:
                    xr_final = {}; cnt = 0
                    for y in S:
                        if y.kind == "ds":
                            cnt += 1
                            if y.tag[0] == "XR": xr_final[self.frags[y.tag[1]]["iv"]] = cnt
            for r in x.defs:
                last_def[r] = (pos + st - 1, x.kind)
            for r in x.srcc:
                last_srcc[r] = pos
            pos += st
        over = 0
        for g, lst in enumerate(self.gaps):
            pass
        return True

    def gap_report(self):
        S = self.S
        cur = None; over = []; n = 0
        for x in S:
            if x.kind == "mfma":
                if cur is not None and self.gap_cost(cur) > 16: over.append((n - 1, self.gap_cost(cur)))
                cur = []; n += 1
            elif cur is not None:
                cur.append(x)
        return over

    def emit(self):
        c = self.c
        S = self.linearise()
        self.check()
        L = []
        L.append(f"; @launch grid=(256,1,1) block=(256,1,1) lds={self.LDS}")
        L.append('.amdgcn_target "amdgcn-amd-amdhsa--gfx950"')
        L.append(".text")
        L.append(f".globl {KN}")
        L.append(".p2align 8")
        L.append(f".type {KN},@function")
        L.append(f"{KN}:")
        for x in S:
            L.append("    " + " ".join(x.text.split()))
        if c["stamps"]:
            L.append("    " + self.stamp().text)
            L.append("    s_waitcnt vmcnt(0)")
            L.append("    " + self.stamp().text)
            L.append("    s_memrealtime s[58:59]")
            L.append("    s_load_dwordx2 s[44:45], s[0:1], 64")
            L.append("    s_getreg_b32 s54, hwreg(HW_REG_XCC_ID)")
            L.append("    s_waitcnt lgkmcnt(0)")
            L.append("    s_mov_b32 s46, 0x1000000\n    s_mov_b32 s47, 0x20000")
            L.append(f"    s_lshl_b32 s3, s2, 2\n    s_add_u32 s3, s3, s{self.S_WAVE}\n    s_lshl_b32 s3, s3, 8")
            L.append("    v_mov_b32 v1, s3")
            L.append("    s_mov_b64 exec, 1")
            vals = [56, 58, 54] + [self.S_ST + 2 * i for i in range(self.nstamp)]
            for i, r in enumerate(vals):
                L.append(f"    v_mov_b32 v{2+i}, s{r}\n    buffer_store_dword v{2+i}, v1, s[44:47], 0 offen offset:{4*i}")
        L.append("L_end:")
        L.append("    s_endpgm")
        L.append('.section .rodata,"a"')
        L.append(".p2align 6")
        L.append(f".amdhsa_kernel {KN}")
        L.append("  .amdhsa_next_free_vgpr 512")
        L.append("  .amdhsa_next_free_sgpr 102")
        L.append("  .amdhsa_accum_offset 256")
        L.append("  .amdhsa_group_segment_fixed_size 0")
        L.append("  .amdhsa_kernarg_size 72")
        L.append("  .amdhsa_user_sgpr_count 2")
        L.append("  .amdhsa_user_sgpr_kernarg_segment_ptr 1")
        L.append("  .amdhsa_system_sgpr_workgroup_id_x 1")
        L.append(".end_amdhsa_kernel")
        return "\n".join(L) + "\n"


if __name__ == "__main__":
    cfg = json.loads(sys.argv[2]) if len(sys.argv) > 2 else {}
    g = Gen(cfg)
    txt = g.emit()
    open(sys.argv[1], "w").write(txt)
    ov = g.gap_report()
    print("instrs", len(g.S), "LDS", g.LDS, "over-budget gaps", len(ov), ov[:10], "nstamp", g.nstamp)
```

```python
import sys, json

KN = "standalone__batchnorm__sampling_kernel"
LOG2E = 1.4426950408889634


def f32bits(x):
    import struct
    return struct.unpack("<I", struct.pack("<f", x))[0]


class I:
    __slots__ = ("text", "kind", "defs", "uses", "tag", "target", "srcc")

    def __init__(self, text, kind, defs=(), uses=(), tag=None, target=None, srcc=()):
        self.text = text; self.kind = kind; self.defs = tuple(defs); self.uses = tuple(uses)
        self.tag = tag; self.target = target; self.srcc = tuple(srcc)


def regs(p, lo, n):
    return [f"{p}{lo+i}" for i in range(n)]


def rng(p, lo, n):
    return f"{p}[{lo}:{lo+n-1}]"


class Gen:
    def __init__(self, cfg):
        self.c = dict(G=8, NB1=6, NB2=6, lead=12, dma_gap=4, pro_w=2, stamps=0, store_aux="", x1_aux="", x2_aux="",
                      w_aux="", wring=11, tail=1, epi_per_step=2, prio=0, bar_lead=14)
        self.c.update(cfg)
        self.G = self.c["G"]
        assert self.G == 8
        self.XSLOT = 16896
        self.WBASE = 4 * self.XSLOT
        self.WRING = self.c["wring"]
        self.WWAVE = self.WRING * 2048
        self.LDS = self.WBASE + 4 * self.WWAVE
        assert self.LDS <= 163840
        self.ACC = 0
        self.XB = 80
        self.BN = 104
        self.V_XR1 = 120
        self.V_WR = 122
        self.V_XD1 = 123
        self.V_WD = 124
        self.V_XD2 = 126
        self.V_XR2 = 127
        self.V_OUT = 123
        self.V_T = [120, 121]
        self.V_PAR = 122
        self.S_P = 4
        self.SRD_X = 20; self.SRD_W = 24; self.SRD_O = 28
        self.S_WAVE = 32; self.S_WB = 33; self.S_X1B = 34; self.S_X2B = 35
        self.S_SO = 36
        self.S_SOX = 37
        self.S_L = 38
        self.S_O4 = 39
        self.S_T = 42
        self.S_DB = 50
        self.S_OB = 51
        self.S_ST = 56
        self.nstamp = 0

    def wfrag(self, kc, k, t):
        f = (kc * 3 + k) * 2 + t
        if f < 64:
            return ("a", 4 * f)
        return ("v", 128 + 4 * (f - 64))

    def acc(self, s, t):
        return self.ACC + (s % 10) * 8 + 4 * t

    def build_mfmas(self):
        G = self.G
        M = []
        frags = []
        self.interval_start = []
        for kc in range(16):
            if kc % 2 == 0:
                self.interval_start.append(len(M))
            fid = {}
            for j in range(G):
                fid[j] = len(frags); frags.append(dict(j=j, kc=kc, ph=1, iv=kc // 2))
            for s in range(G + 1):
                for t in range(2):
                    for k in range(3):
                        j = s + k - 1
                        if 0 <= j < G:
                            M.append(dict(s=s, t=t, k=k, kc=kc, fr=fid[j], j=j))
        self.ph1_end = len(M)
        sub = []
        for j in range(G, 16):
            taps = [k for k in (2, 1, 0) if 0 <= j + 1 - k < 16]
            sub.append((j, taps, 0))
        if self.c["tail"]:
            sub = [x for x in sub if x[0] < 14]
            sub += [(14, [2], 0), (14, [1], 0), (15, [2], 0), (14, [0], 0), (15, [1], 1)]
        seen = set()
        self.sub_start = []
        for (j, taps, split) in sub:
            if j not in seen:
                seen.add(j); self.interval_start.append(len(M))
            self.sub_start.append((j, taps, len(M)))
            if not split:
                for kp in range(8):
                    f = []
                    for kc in (2 * kp, 2 * kp + 1):
                        f.append(len(frags)); frags.append(dict(j=j, kc=kc, ph=2, iv=j))
                    for k in taps:
                        for t in range(2):
                            for u in range(2):
                                M.append(dict(s=j + 1 - k, t=t, k=k, kc=2 * kp + u, fr=f[u], j=j))
            else:
                f = []
                for kc in range(16):
                    f.append(len(frags)); frags.append(dict(j=j, kc=kc, ph=2, iv=j, hold=kc))
                for t in range(2):
                    for k in taps:
                        for kc in range(16):
                            M.append(dict(s=j + 1 - k, t=t, k=k, kc=kc, fr=f[kc], j=j))
        assert len(M) == 1472, len(M)
        self.M = M; self.frags = frags
        for i, m in enumerate(M):
            fr = frags[m["fr"]]
            fr.setdefault("first", i); fr["last"] = i
        self.acc_first = {}; self.acc_last = {}
        for i, m in enumerate(M):
            self.acc_first.setdefault((m["s"], m["t"]), i); self.acc_last[(m["s"], m["t"])] = i

    def gap_cost(self, lst):
        t = 4
        nv = [x for x in lst if x.kind not in ("valu", "trans")]
        vv = [x for x in lst if x.kind in ("valu", "trans")]
        for x in nv:
            t += 4
        for x in vv:
            t = max(t, 8) + (8 if x.kind == "trans" else 4)
        return t

    def place(self, ins, lo, hi=None, force=False):
        g = max(lo, 0)
        n = len(self.M)
        while g < n - 1:
            if force or self.gap_cost(self.gaps[g] + [ins]) <= 16:
                break
            g += 1
        if hi is not None and g > hi:
            raise Exception(f"cannot place {ins.text} in [{lo},{hi}]")
        g = min(g, n - 1)
        self.gaps[g].append(ins)
        return g

    def stamp(self):
        r = self.S_ST + 2 * self.nstamp
        self.nstamp += 1
        assert r + 1 < 102
        return I(f"s_memtime s[{r}:{r+1}]", "smem")

    def w_unit(self, u):
        kc, kk = divmod(u, 3)
        k = (1, 2, 0)[kk]
        aux = self.c["w_aux"]
        pos = (u % self.WRING) * 2048
        return [
            I(f"s_add_u32 m0, s{self.S_WB}, {pos}", "salu", defs=["m0"]),
            I(f"s_mov_b32 s{self.S_SO}, {k*524288 + kc*32768}", "salu", defs=[f"s{self.S_SO}"]),
            I(f"buffer_load_dwordx4 v{self.V_WD}, s[{self.SRD_W}:{self.SRD_W+3}], s{self.S_SO} offen {aux} lds", "dma",
              uses=["m0", f"v{self.V_WD}"], tag=("W", u, 0)),
            I(f"buffer_load_dwordx4 v{self.V_WD+1}, s[{self.SRD_W}:{self.SRD_W+3}], s{self.S_SO} offen offset:1024 {aux} lds", "dma",
              uses=["m0", f"v{self.V_WD+1}"], tag=("W", u, 1)),
        ]

    def x_slot(self, p):
        slot = (p % 4) * self.XSLOT
        out = []
        if p < 8:
            aux = self.c["x1_aux"]
            out.append(I(f"s_add_u32 m0, s{self.S_X1B}, {slot}", "salu", defs=["m0"]))
            out.append(I(f"s_mov_b32 s{self.S_SOX}, {p*128}", "salu", defs=[f"s{self.S_SOX}"]))
            for n in range(4):
                off = f"offset:{n*1024} " if n else ""
                out.append(I(f"buffer_load_dwordx4 v{self.V_XD1}, s[{self.SRD_X}:{self.SRD_X+3}], s{self.S_SOX} offen {off}{aux} lds",
                             "dma", uses=["m0", f"v{self.V_XD1}"], tag=("X", p, n)))
        else:
            aux = self.c["x2_aux"]
            out.append(I(f"s_add_u32 m0, s{self.S_X2B}, {slot}", "salu", defs=["m0"]))
            for n in range(4):
                off = f"offset:{n*1056} " if n else ""
                out.append(I(f"s_mov_b32 s{self.S_SOX}, {n*16384 - n*1056 + p*1024}", "salu", defs=[f"s{self.S_SOX}"]))
                out.append(I(f"buffer_load_dwordx4 v{self.V_XD2}, s[{self.SRD_X}:{self.SRD_X+3}], s{self.S_SOX} offen {off}{aux} lds",
                             "dma", uses=["m0", f"v{self.V_XD2}"], tag=("X", p, n)))
        return out

    def w_reads(self, u):
        kc, kk = divmod(u, 3)
        k = (1, 2, 0)[kk]
        pos = (u % self.WRING) * 2048
        out = []
        for t in range(2):
            p, r = self.wfrag(kc, k, t)
            for m in range(2):
                out.append(I(f"ds_read_b64_tr_b16 {rng(p, r+2*m, 2)}, v{self.V_WR} offset:{pos + 256*m + 8*t}", "ds",
                             defs=regs(p, r + 2 * m, 2), uses=[f"v{self.V_WR}"], tag=("WR", u, t, m)))
        return out

    def x_read(self, fi):
        fr = self.frags[fi]
        b = fr["buf"]
        slot = (fr["iv"] % 4) * self.XSLOT
        if fr["ph"] == 1:
            a = self.V_XR1 + (fr["kc"] & 1); off = slot + fr["j"] * 1024
        else:
            a = self.V_XR2; off = slot + fr["kc"] * 64
        return I(f"ds_read_b128 {rng('v', b, 4)}, v{a} offset:{off}", "ds", defs=regs("v", b, 4), uses=[f"v{a}"], tag=("XR", fi))

    def epi_pairs(self, s, vals, temps):
        groups = []
        L = f"s{self.S_L}"
        for pr in vals:
            a = [self.acc(s, t) + e for (t, e) in pr]
            sc = [self.BN + 4 * t + e for (t, e) in pr]
            sh = [self.BN + 8 + 4 * t + e for (t, e) in pr]
            T = temps[:len(pr)]
            groups.append([I(f"v_fma_f32 v{a[i]}, v{a[i]}, v{sc[i]}, v{sh[i]}", "valu", defs=[f"v{a[i]}"], uses=[f"v{a[i]}", f"v{sc[i]}", f"v{sh[i]}"]) for i in range(len(pr))])
            groups.append([I(f"v_exp_f32_e64 v{T[i]}, -v{a[i]}", "trans", defs=[f"v{T[i]}"], uses=[f"v{a[i]}"]) for i in range(len(pr))])
            groups.append([I(f"v_fma_f32 v{T[i]}, v{T[i]}, {L}, {L}", "valu", defs=[f"v{T[i]}"], uses=[f"v{T[i]}"]) for i in range(len(pr))])
            groups.append([I(f"v_rcp_f32_e32 v{T[i]}, v{T[i]}", "trans", defs=[f"v{T[i]}"], uses=[f"v{T[i]}"]) for i in range(len(pr))])
            groups.append([I(f"v_mul_f32_e32 v{a[i]}, v{a[i]}, v{T[i]}", "valu", defs=[f"v{a[i]}"], uses=[f"v{a[i]}", f"v{T[i]}"]) for i in range(len(pr))])
            cv = []
            for i in range(0, len(pr), 2):
                (t, e) = pr[i]
                d = self.acc(s, 0) + 2 * t + e // 2
                cv.append(I(f"v_cvt_pk_bf16_f32 v{d}, v{a[i]}, v{a[i+1]}", "valu", defs=[f"v{d}"], uses=[f"v{a[i]}", f"v{a[i+1]}"]))
            groups.append(cv)
        return groups

    def store(self, s):
        d = self.acc(s, 0)
        so = "0" if s < 4 else f"s{self.S_O4 + (s >> 2) - 1}"
        off = f"offset:{(s & 3) * 1024} " if s & 3 else ""
        return I(f"buffer_store_dwordx4 {rng('v', d, 4)}, v{self.V_OUT}, s[{self.SRD_O}:{self.SRD_O+3}], {so} offen {off}{self.c['store_aux']}",
                 "store", uses=regs("v", d, 4) + [f"v{self.V_OUT}"], tag=("ST", s))

    def schedule(self):
        c = self.c
        M = self.M; n = len(M)
        self.gaps = [[] for _ in range(n)]
        pro = []
        self.pro = pro
        lead = c["lead"]
        ring = 0
        last_user = {}
        holdregs = None
        for fi, fr in enumerate(self.frags):
            if "hold" in fr:
                pool = [self.ACC + 8 * q + 4 * h for q in (6, 7, 8, 9, 0, 1, 2) for h in range(2)] + [self.XB + 4 * q for q in range(6)]
                fr["buf"] = pool[fr["hold"]]
                if fr["buf"] < self.XB:
                    fr["prev_last"] = None; fr["accset"] = (fr["buf"] - self.ACC) // 8
                    continue
            else:
                nb = c["NB1"] if fr["ph"] == 1 else c["NB2"]
                fr["buf"] = self.XB + 4 * (ring % 6)
                ring += 1
            fr["prev_last"] = last_user.get(fr["buf"])
            last_user[fr["buf"]] = fr["last"]
        bar_gap = {}
        for p in range(1, 16):
            g = self.interval_start[p] - c["bar_lead"]
            w = I("WAITVM", "wait", target=("X", p, 3))
            b = I("s_barrier", "bar", tag=("BAR", p))
            while self.gap_cost(self.gaps[g] + [w, b]) > 16:
                g += 1
            self.gaps[g] += [w, b]
            bar_gap[p] = g
        self.bar_gap = bar_gap
        for fi, fr in enumerate(self.frags):
            if "hold" in fr:
                if fr["hold"] % 4 == 0:
                    self.gaps[fr["first"] - 1].insert(0, I("WAITLGKM", "wait", target=("XR", fi + 3)))
            elif fr["ph"] == 2:
                if fr["kc"] % 2 == 0:
                    self.gaps[fr["first"] - 1].insert(0, I("WAITLGKM", "wait", target=("XR", fi + 1)))
            elif fr["first"] > 0:
                self.gaps[fr["first"] - 1].insert(0, I("WAITLGKM", "wait", target=("XR", fi)))
        self.epi_done = {}
        tail = []
        self.tail = tail
        g = self.ph1_end + 2
        g0 = self.ph1_end
        rb = self.rebuild_out()
        for ins in rb:
            g0 = self.place(ins, g0) + 1
        g = g0
        steps = [x[2] for x in self.sub_start]
        pace = c["epi_per_step"]
        for s in range(16):
            lo = max(g, self.acc_last[(s, 0)] + 9)
            if s < 13 and pace:
                lo = max(lo, self.ph1_end + (s * 96) // pace + 2)
            if s == 15:
                break
            for t in range(2):
                lo = max(lo, self.acc_last[(s, t)] + 9)
                for grp in self.epi_pairs(s, [[(t, 0), (t, 1)], [(t, 2), (t, 3)]], self.V_T):
                    mx = lo
                    for ins in grp:
                        mx = self.place(ins, lo); lo = mx
                    lo = mx + 1
            gs = self.place(self.store(s), lo)
            self.epi_done[s] = gs
            g = gs
        s = 15
        lo = max(g, self.acc_last[(s, 0)] + 9)
        T4 = [self.XB + i for i in range(4)] if not c["tail"] else [self.acc(13, 0) + i for i in range(8)]
        if c["tail"]:
            lo = max(lo, self.epi_done[13] + 2)
            for grp in self.epi_pairs(s, [[(0, 0), (0, 1), (0, 2), (0, 3)]], T4[:4]):
                for ins in grp:
                    if lo < n - 1:
                        lo = self.place(ins, lo)
                        if lo == n - 1:
                            self.gaps[n - 1].remove(ins); tail.append(ins)
                    else:
                        tail.append(ins)
                if lo < n - 1:
                    lo += 1
            tail.append(I("PADMFMA", "pad"))
            for grp in self.epi_pairs(s, [[(1, 0), (1, 1), (1, 2), (1, 3)]], T4[4:8]):
                tail += grp
        else:
            tail.append(I("PADMFMA", "pad"))
            T8 = [self.XB + i for i in range(8)]
            for grp in self.epi_pairs(s, [[(t, e) for t in range(2) for e in range(4)]], T8):
                tail += grp
        tail.append(self.store(s))
        for s in range(10, 16):
            assert self.epi_done[s - 10] + 1 < min(self.acc_first[(s, 0)], self.acc_first[(s, 1)]), (s, self.epi_done[s - 10], self.acc_first[(s, 0)])
        cur = 0
        for fi, fr in enumerate(self.frags):
            rd = self.x_read(fi)
            lo = fr["first"] - lead
            if fr["prev_last"] is not None:
                lo = max(lo, fr["prev_last"])
            if "accset" in fr:
                q = fr["accset"]
                prev = q + 10 if q + 10 in self.epi_done else q
                lo = max(fr["first"] - 36, self.epi_done[prev] + 2)
            if fr["iv"] in bar_gap:
                lo = max(lo, bar_gap[fr["iv"]] + 1)
            if lo < 0:
                pro.append(rd); continue
            lo = max(lo, cur)
            cur = self.place(rd, lo, fr["first"] - 4 - (fr.get("hold", 0) % 4) - (fr["kc"] & 1 if fr["ph"] == 2 else 0))
            fr["rdgap"] = cur
        wr_gap = {}
        kc_start = [self.interval_start[k // 2] + (46 if k & 1 else 0) for k in range(16)]
        for u in range(48):
            kc, kk = divmod(u, 3)
            rds = self.w_reads(u)
            if kc == 0:
                continue
            lo = kc_start[kc - 1] + c.get("wr_off", 8) + 10 * kk
            lo = self.place(I("WAITVM", "wait", target=("W", u, 1)), lo)
            for r in rds:
                lo = self.place(r, lo, kc_start[kc] - 4)
                lo += c.get("wr_step", 1)
            wr_gap[u] = lo
        for kc in range(1, 16):
            self.gaps[kc_start[kc] - 1].insert(0, I("WAITLGKM", "wait", target=("WR", kc * 3 + 2, 1, 1)))
        todo = []
        npw = c["pro_w"]
        for u in range(3 * npw, 48):
            kc = u // 3
            need = kc_start[kc - 1] + c.get("wr_off", 8) + 10 * (u % 3)
            if u >= self.WRING:
                v = u - self.WRING
                if v >= 3:
                    free = min(fr["first"] for fr in self.frags if fr["ph"] == 1 and fr.get("rdgap", -1) >= wr_gap[v])
                    free = min(free, kc_start[v // 3])
                else:
                    free = 0
            else:
                free = 0
            todo.append((need, free, self.w_unit(u), ("W", u)))
        npx = c.get("pro_x", 1)
        for p in range(npx, 16):
            need = bar_gap[p]
            free = bar_gap[p - 2] + 1 if p >= 4 else 0
            todo.append((need, free, self.x_slot(p), ("X", p)))
        todo.sort(key=lambda x: x[0])
        cur = 0
        self.dma_gap = {}
        pend = list(todo)
        while pend:
            cand = [x for x in pend if x[1] <= cur]
            if not cand:
                cur = min(x[1] for x in pend); continue
            it = cand[0]; pend.remove(it)
            for ins in it[2]:
                cur = self.place(ins, cur)
                if ins.kind == "dma":
                    self.dma_gap[ins.tag] = cur
                    cur += c["dma_gap"]
            assert cur - c["dma_gap"] < it[0] - 4, (it[3], cur, it[0])
        self.place_bn(kc_start)
        P = []
        for u in range(3):
            P += self.w_unit(u)
        P += self.x_slot(0)
        for u in range(3, 3 * npw):
            P += self.w_unit(u)
        for p in range(1, npx):
            P += self.x_slot(p)
        if c["stamps"]: P.append(self.stamp())
        P.append(I("WAITVM", "wait", target=("W", 0, 1)))
        P += self.w_reads(0)
        P.append(I("WAITVM", "wait", target=("W", 1, 1)))
        P += self.w_reads(1)
        P.append(I("WAITVM", "wait", target=("W", 2, 1)))
        P += self.w_reads(2)
        P.append(I("WAITVM", "wait", target=("X", 0, 3)))
        if c["stamps"]: P.append(self.stamp())
        P.append(I("s_barrier", "bar", tag=("BAR", 0)))
        P += pro
        P.append(I("WAITLGKM", "wait", target=("XR", 0)))
        self.pro = P
        if c["stamps"]:
            P.append(self.stamp())
            for p in range(1, 16):
                self.gaps[self.interval_start[p] - 1].append(self.stamp())

    def rebuild_out(self):
        o = self.V_OUT; t = self.V_T[0]
        return [
            I(f"v_mbcnt_lo_u32_b32 v{t}, -1, 0", "valu", defs=[f"v{t}"]),
            I(f"v_mbcnt_hi_u32_b32 v{t}, -1, v{t}", "valu", defs=[f"v{t}"], uses=[f"v{t}"]),
            I(f"v_and_b32_e32 v{o}, 15, v{t}", "valu", defs=[f"v{o}"], uses=[f"v{t}"]),
            I(f"v_lshlrev_b32_e32 v{o}, 14, v{o}", "valu", defs=[f"v{o}"], uses=[f"v{o}"]),
            I(f"v_and_b32_e32 v{t}, 48, v{t}", "valu", defs=[f"v{t}"], uses=[f"v{t}"]),
            I(f"v_add3_u32 v{o}, v{o}, v{t}, s{self.S_T+7}", "valu", defs=[f"v{o}"], uses=[f"v{o}", f"v{t}"]),
        ]

    def place_bn(self, kc_start):
        T = self.ACC + 72
        A = self.BN + 15
        U = self.BN + 14
        sP = self.S_P
        g = kc_start[1] + 2
        seq = [
            I(f"v_mbcnt_lo_u32_b32 v{A}, -1, 0", "valu", defs=[f"v{A}"]),
            I(f"v_mbcnt_hi_u32_b32 v{A}, -1, v{A}", "valu", defs=[f"v{A}"], uses=[f"v{A}"]),
            I(f"v_and_b32_e32 v{A}, 48, v{A}", "valu", defs=[f"v{A}"], uses=[f"v{A}"]),
            I(f"v_add_u32_e32 v{A}, s{self.S_DB}, v{A}", "valu", defs=[f"v{A}"], uses=[f"v{A}"]),
            I(f"global_load_dwordx4 {rng('v', T, 4)}, v{A}, s[{sP+6}:{sP+7}]", "vload", defs=regs("v", T, 4), uses=[f"v{A}"], tag=("PV",)),
            I(f"global_load_dwordx4 {rng('v', T+4, 4)}, v{A}, s[{sP+8}:{sP+9}]", "vload", defs=regs("v", T + 4, 4), uses=[f"v{A}"], tag=("PG",)),
        ]
        for ins in seq:
            g = self.place(ins, g) + 1
        g = max(g, kc_start[4])
        g = self.place(I("WAITVM", "wait", target=("PG",)), g) + 1
        k1 = f32bits(1.0 / (LOG2E * LOG2E)); k2 = f32bits(1e-5 / (LOG2E * LOG2E))
        sK = self.S_T + 5
        g = self.place(I(f"s_mov_b32 s{sK}, {k1:#x}", "salu", defs=[f"s{sK}"]), g) + 1

        def unpack(d, src, i):
            if i & 1:
                return I(f"v_and_b32_e32 v{d}, 0xffff0000, v{src + i // 2}", "valu", defs=[f"v{d}"], uses=[f"v{src + i // 2}"])
            return I(f"v_lshlrev_b32_e32 v{d}, 16, v{src + i // 2}", "valu", defs=[f"v{d}"], uses=[f"v{src + i // 2}"])
        for i in range(8):
            d = self.BN + i
            for ins in [unpack(d, T, i),
                        I(f"v_mul_f32_e32 v{d}, s{sK}, v{d}", "valu", defs=[f"v{d}"], uses=[f"v{d}"]),
                        I(f"v_add_f32_e32 v{d}, {k2:#x}, v{d}", "valu", defs=[f"v{d}"], uses=[f"v{d}"]),
                        I(f"v_rsq_f32_e32 v{d}, v{d}", "trans", defs=[f"v{d}"], uses=[f"v{d}"]),
                        unpack(U, T + 4, i),
                        I(f"v_mul_f32_e32 v{d}, v{d}, v{U}", "valu", defs=[f"v{d}"], uses=[f"v{d}", f"v{U}"])]:
                g = self.place(ins, g) + 1
        for ins in [
            I(f"global_load_dwordx4 {rng('v', T, 4)}, v{A}, s[{sP+4}:{sP+5}]", "vload", defs=regs("v", T, 4), uses=[f"v{A}"], tag=("PM",)),
            I(f"global_load_dwordx4 {rng('v', T+4, 4)}, v{A}, s[{sP+10}:{sP+11}]", "vload", defs=regs("v", T + 4, 4), uses=[f"v{A}"], tag=("PB",)),
        ]:
            g = self.place(ins, g) + 1
        g = max(g + 100, kc_start[9])
        g = self.place(I("WAITVM", "wait", target=("PB",)), g) + 1
        for i in range(8):
            d = self.BN + 8 + i
            u = U if i < 6 else T + (i - 6)
            for ins in [unpack(d, T + 4, i),
                        I(f"v_mul_f32_e32 v{d}, s{self.S_L}, v{d}", "valu", defs=[f"v{d}"], uses=[f"v{d}"]),
                        unpack(u, T, i),
                        I(f"v_fma_f32 v{d}, -v{u}, v{self.BN+i}, v{d}", "valu", defs=[f"v{d}"], uses=[f"v{u}", f"v{self.BN+i}", f"v{d}"])]:
                g = self.place(ins, g) + 1
        assert g < self.ph1_end - 2, g

    def entry(self):
        c = self.c
        E = []
        e = lambda t, k="salu", d=(), u=(): E.append(I(t, k, defs=d, uses=u))
        if c["stamps"]:
            E.append(self.stamp())
            E.append(I("s_memrealtime s[52:53]", "smem"))
        e("s_cmp_ge_u32 s2, 256")
        e("s_cbranch_scc1 L_end")
        e(f"s_load_dwordx16 s[{self.S_P}:{self.S_P+15}], s[0:1], 0", "smem")
        T = self.S_T
        e("v_lshrrev_b32_e32 v1, 6, v0", "valu", ["v1"], ["v0"])
        e("v_and_b32_e32 v0, 63, v0", "valu", ["v0"], ["v0"])
        e(f"v_readfirstlane_b32 s{self.S_WAVE}, v1", "valu", [f"s{self.S_WAVE}"], ["v1"])
        e(f"s_and_b32 s{T}, s2, 7")
        e(f"s_lshl_b32 s{T}, s{T}, 3")
        e(f"s_lshr_b32 s{T+1}, s2, 5")
        e(f"s_add_u32 s{T}, s{T}, s{T+1}")
        e(f"s_lshl_b32 s{self.S_OB}, s{T}, 18")
        e(f"s_lshr_b32 s{T+1}, s2, 3")
        e(f"s_and_b32 s{T+1}, s{T+1}, 3")
        e(f"s_lshl_b32 s{T+1}, s{T+1}, 8")
        e(f"s_lshl_b32 s{T+2}, s{self.S_WAVE}, 6")
        e(f"s_add_u32 s{self.S_DB}, s{T+1}, s{T+2}")
        e(f"s_add_u32 s{T+7}, s{self.S_DB}, s{self.S_OB}")
        wd = self.V_WD
        e(f"v_lshrrev_b32_e32 v1, 2, v0", "valu", ["v1"], ["v0"])
        e(f"v_lshlrev_b32_e32 v1, 10, v1", "valu", ["v1"], ["v1"])
        e(f"v_and_b32_e32 v2, 3, v0", "valu", ["v2"], ["v0"])
        e(f"v_lshlrev_b32_e32 v2, 4, v2", "valu", ["v2"], ["v2"])
        e(f"v_add3_u32 v{wd}, v1, v2, s{self.S_DB}", "valu", [f"v{wd}"], ["v1", "v2"])
        e(f"v_add_u32_e32 v{wd+1}, {16384-1024}, v{wd}", "valu", [f"v{wd+1}"], [f"v{wd}"])
        e(f"s_mul_i32 s{self.S_WB}, s{self.S_WAVE}, {self.WWAVE}")
        e(f"s_add_u32 s{self.S_WB}, s{self.S_WB}, {self.WBASE}")
        xd = self.V_XD1
        e(f"s_and_b32 s{T+3}, s{self.S_WAVE}, 1")
        e(f"s_lshr_b32 s{T+4}, s{self.S_WAVE}, 1")
        e(f"s_lshl_b32 s{T+5}, s{T+3}, 13")
        e(f"s_lshl_b32 s{T+6}, s{T+4}, 12")
        e(f"s_add_u32 s{self.S_X1B}, s{T+5}, s{T+6}")
        e(f"s_lshl_b32 s{T+5}, s{T+3}, 3")
        e(f"v_lshrrev_b32_e32 v1, 3, v0", "valu", ["v1"], ["v0"])
        e(f"v_add_u32_e32 v1, s{T+5}, v1", "valu", ["v1"], ["v1"])
        e(f"v_lshrrev_b32_e32 v2, 1, v1", "valu", ["v2"], ["v1"])
        e(f"v_xor_b32_e32 v2, v2, v0", "valu", ["v2"], ["v2", "v0"])
        e(f"v_and_b32_e32 v2, 7, v2", "valu", ["v2"], ["v2"])
        e(f"v_lshlrev_b32_e32 v2, 4, v2", "valu", ["v2"], ["v2"])
        e(f"v_lshlrev_b32_e32 v1, 14, v1", "valu", ["v1"], ["v1"])
        e(f"s_add_u32 s{T+6}, s{T+6}, s{self.S_OB}")
        e(f"v_add3_u32 v{xd}, v1, v2, s{T+6}", "valu", [f"v{xd}"], ["v1", "v2"])
        self.entry_split = len(E)
        e(f"s_lshl_b32 s{T+5}, s{self.S_WAVE}, 16")
        e(f"s_add_u32 s{T+5}, s{T+5}, s{self.S_OB}")
        e(f"v_lshlrev_b32_e32 v1, 4, v0", "valu", ["v1"], ["v0"])
        e(f"v_add_u32_e32 v{self.V_XD2}, s{T+5}, v1", "valu", [f"v{self.V_XD2}"], ["v1"])
        e(f"s_mul_i32 s{self.S_X2B}, s{self.S_WAVE}, {4*1056}")
        e(f"v_and_b32_e32 v1, 15, v0", "valu", ["v1"], ["v0"])
        e(f"v_lshrrev_b32_e32 v2, 4, v0", "valu", ["v2"], ["v0"])
        e(f"v_mul_u32_u24_e32 v3, 1056, v1", "valu", ["v3"], ["v1"])
        e(f"v_lshl_add_u32 v{self.V_XR2}, v2, 4, v3", "valu", [f"v{self.V_XR2}"], ["v2", "v3"])
        e(f"v_lshrrev_b32_e32 v3, 1, v1", "valu", ["v3"], ["v1"])
        e(f"v_xor_b32_e32 v3, v3, v2", "valu", ["v3"], ["v3", "v2"])
        e(f"v_lshlrev_b32_e32 v3, 4, v3", "valu", ["v3"], ["v3"])
        e(f"v_and_b32_e32 v4, 7, v1", "valu", ["v4"], ["v1"])
        e(f"v_lshl_add_u32 v3, v4, 7, v3", "valu", ["v3"], ["v4", "v3"])
        e(f"v_lshrrev_b32_e32 v4, 3, v1", "valu", ["v4"], ["v1"])
        e(f"v_lshl_add_u32 v{self.V_XR1}, v4, 13, v3", "valu", [f"v{self.V_XR1}"], ["v4", "v3"])
        e(f"v_xor_b32_e32 v{self.V_XR1+1}, 64, v{self.V_XR1}", "valu", [f"v{self.V_XR1+1}"], [f"v{self.V_XR1}"])
        e(f"v_and_b32_e32 v3, 15, v0", "valu", ["v3"], ["v0"])
        e(f"v_lshlrev_b32_e32 v3, 4, v3", "valu", ["v3"], ["v3"])
        e(f"v_lshl_add_u32 v3, v2, 9, v3", "valu", ["v3"], ["v2", "v3"])
        e(f"v_add_u32_e32 v{self.V_WR}, s{self.S_WB}, v3", "valu", [f"v{self.V_WR}"], ["v3"])
        e(f"s_mov_b32 s{self.S_L}, {f32bits(LOG2E):#x}")
        for i in range(3):
            e(f"s_movk_i32 s{self.S_O4+i}, {4096*(i+1)}")
        sP = self.S_P
        e(f"s_mov_b32 s{self.SRD_O}, s{sP+12}")
        e(f"s_and_b32 s{self.SRD_O+1}, s{sP+13}, 0xffff")
        e(f"s_mov_b32 s{self.SRD_O+2}, 0x1000000")
        e(f"s_mov_b32 s{self.SRD_O+3}, 0x20000")
        late = E[self.entry_split:]
        E = E[:self.entry_split]
        E.append(I(f"s_mov_b32 s{self.SRD_W+2}, 0x180000", "salu"))
        E.append(I(f"s_mov_b32 s{self.SRD_W+3}, 0x20000", "salu"))
        E.append(I(f"s_mov_b32 s{self.SRD_X+2}, 0x1000000", "salu"))
        E.append(I(f"s_mov_b32 s{self.SRD_X+3}, 0x20000", "salu"))
        E.append(I("s_waitcnt lgkmcnt(0)", "rawwait"))
        if c["stamps"]:
            E.append(self.stamp())
        E.append(I(f"s_mov_b32 s{self.SRD_W}, s{sP+2}", "salu"))
        E.append(I(f"s_and_b32 s{self.SRD_W+1}, s{sP+3}, 0xffff", "salu"))
        E.append(I(f"s_mov_b32 s{self.SRD_X}, s{sP}", "salu"))
        E.append(I(f"s_and_b32 s{self.SRD_X+1}, s{sP+1}, 0xffff", "salu"))
        return E, late

    def linearise(self):
        c = self.c
        E, late = self.entry()
        self.build_mfmas()
        self.schedule()
        P = self.pro
        k = max(i for i, x in enumerate(P) if x.kind == "dma") + 1
        S = E + P[:k] + late + P[k:]
        for i, m in enumerate(self.M):
            s, t = m["s"], m["t"]
            a = self.acc(s, t)
            wp, wr = self.wfrag(m["kc"], m["k"], t)
            xb = self.frags[m["fr"]]["buf"]
            first = self.acc_first[(s, t)] == i
            cc = "0" if first else rng("v", a, 4)
            S.append(I(f"v_mfma_f32_16x16x32_bf16 {rng('v', a, 4)}, {rng(wp, wr, 4)}, {rng('v', xb, 4)}, {cc}", "mfma",
                       defs=regs("v", a, 4), uses=regs(wp, wr, 4) + regs("v", xb, 4) + ([] if first else regs("v", a, 4)),
                       srcc=[] if first else regs("v", a, 4)))
            gp = self.gaps[i]
            S += [x for x in gp if x.kind not in ("valu", "trans")] + [x for x in gp if x.kind in ("valu", "trans")]
        S += self.tail
        out = []
        vm = []
        vm_done = 0
        lg = []; lg_done = 0
        for x in S:
            if x.kind in ("dma", "store", "vload"):
                vm.append(x.tag)
            elif x.kind == "ds":
                lg.append(x.tag)
            if x.text == "WAITVM":
                idx = vm.index(x.target) + 1
                if idx <= vm_done:
                    continue
                nn = len(vm) - idx
                assert nn <= 63
                vm_done = idx
                out.append(I(f"s_waitcnt vmcnt({nn})", "wait", tag=("vm", x.target)))
            elif x.text == "WAITLGKM":
                idx = lg.index(x.target) + 1
                if idx <= lg_done:
                    continue
                nn = len(lg) - idx
                if nn > 15:
                    nn = 15; idx = len(lg) - 15
                lg_done = idx
                out.append(I(f"s_waitcnt lgkmcnt({nn})", "wait", tag=("lg", x.target)))
            elif x.text == "PADMFMA":
                out.append(I("s_nop 7", "nop"))
            else:
                out.append(x)
        self.S = out
        return out

    def check(self):
        S = self.S
        pend = {}
        lg = []; vm = []
        lg_done = vm_done = 0
        last_def = {}
        last_srcc = {}
        last_store = {}
        pos = 0
        import re
        wr_idx = {}; xr_idx = {}
        bar_seen = {}
        vm_idx = {}
        for x in S:
            st = 1
            if x.kind == "nop":
                st = int(x.text.split()[1]) + 1
            if x.kind == "wait":
                mm = re.match(r"s_waitcnt (\w+)\((\d+)\)", x.text)
                if mm.group(1) == "vmcnt": vm_done = max(vm_done, len(vm) - int(mm.group(2)))
                else: lg_done = max(lg_done, len(lg) - int(mm.group(2)))
            for r in x.uses + x.defs:
                if r in pend:
                    q, i = pend[r]
                    if (q == "lg" and i > lg_done) or (q == "vm" and i > vm_done):
                        raise Exception(f"use of pending {r} in {x.text}")
                    del pend[r]
            for r in x.uses:
                if r in last_def:
                    p, k = last_def[r]
                    d = pos - p - 1
                    need = 0
                    if k == "mfma":
                        if x.kind == "mfma": need = 0 if r in x.srcc else 8
                        else: need = 8
                    elif k in ("valu", "trans"):
                        if x.kind == "mfma": need = 2
                        elif k == "trans" and x.kind in ("valu",): need = 1
                        if r.startswith("s") and x.kind in ("dma", "store", "vload"): need = 5
                        if "readfirstlane" in x.text: need = 1
                    elif k == "salu" and r == "m0": need = 1
                    if d < need:
                        raise Exception(f"hazard RAW {r}: {k} -> {x.text} dist {d} < {need}")
            for r in x.defs:
                if r in last_def and last_def[r][1] == "mfma" and not (x.kind == "mfma" and r in x.srcc):
                    d = pos - last_def[r][0] - 1
                    if d < 8: raise Exception(f"hazard WAW {r}: mfma -> {x.text} dist {d}")
                if r in last_srcc and x.kind in ("valu", "trans") and pos - last_srcc[r] - 1 < 3:
                    raise Exception(f"hazard WAR srcc {r}: {x.text}")
                if r in last_store and pos - last_store[r] - 1 < 2:
                    raise Exception(f"hazard WAR store {r}: {x.text}")
            if x.kind == "ds":
                lg.append(x.tag)
                for r in x.defs: pend[r] = ("lg", len(lg))
                if x.tag[0] == "WR":
                    wr_idx[x.tag[1]] = len(lg)
                    assert vm_idx[("W", x.tag[1], 1)] <= vm_done, ("W not landed", x.tag)
                else:
                    fr = self.frags[x.tag[1]]
                    xr_idx[fr["iv"]] = len(lg)
                    assert fr["iv"] in bar_seen, ("X read before barrier", x.tag)
            elif x.kind in ("dma", "store", "vload"):
                vm.append(x.tag); vm_idx[x.tag] = len(vm)
                for r in x.defs: pend[r] = ("vm", len(vm))
                if x.kind == "dma" and x.tag[0] == "W" and x.tag[1] >= self.WRING:
                    assert wr_idx[x.tag[1] - self.WRING] <= lg_done, ("W slot overwritten early", x.tag)
                if x.kind == "dma" and x.tag[0] == "X" and x.tag[1] >= 4:
                    p = x.tag[1]
                    ok = any(lgd >= xr_final[p - 4] for (q, lgd) in bar_seen.items())
                    assert ok, ("X slot overwritten early", x.tag)
                if x.kind == "store":
                    for r in x.uses: last_store[r] = pos
            elif x.kind == "bar":
                p = x.tag[1]
                assert vm_idx[("X", p, 3)] <= vm_done, ("barrier before X landed", p)
                bar_seen[p] = lg_done
                if p == 0:
                    xr_final = {}; cnt = 0
                    for y in S:
                        if y.kind == "ds":
                            cnt += 1
                            if y.tag[0] == "XR": xr_final[self.frags[y.tag[1]]["iv"]] = cnt
            for r in x.defs:
                last_def[r] = (pos + st - 1, x.kind)
            for r in x.srcc:
                last_srcc[r] = pos
            pos += st
        over = 0
        for g, lst in enumerate(self.gaps):
            pass
        return True

    def gap_report(self):
        S = self.S
        cur = None; over = []; n = 0
        for x in S:
            if x.kind == "mfma":
                if cur is not None and self.gap_cost(cur) > 16: over.append((n - 1, self.gap_cost(cur)))
                cur = []; n += 1
            elif cur is not None:
                cur.append(x)
        return over

    def emit(self):
        c = self.c
        S = self.linearise()
        self.check()
        L = []
        L.append(f"; @launch grid=(256,1,1) block=(256,1,1) lds={self.LDS}")
        L.append('.amdgcn_target "amdgcn-amd-amdhsa--gfx950"')
        L.append(".text")
        L.append(f".globl {KN}")
        L.append(".p2align 8")
        L.append(f".type {KN},@function")
        L.append(f"{KN}:")
        for x in S:
            L.append("    " + " ".join(x.text.split()))
        if c["stamps"]:
            L.append("    " + self.stamp().text)
            L.append("    s_waitcnt vmcnt(0)")
            L.append("    " + self.stamp().text)
            L.append("    s_memrealtime s[54:55]")
            L.append("    s_load_dwordx2 s[44:45], s[0:1], 64")
            L.append("    s_getreg_b32 s48, hwreg(HW_REG_XCC_ID)")
            L.append("    s_waitcnt lgkmcnt(0)")
            L.append("    s_mov_b32 s46, 0x1000000\n    s_mov_b32 s47, 0x20000")
            L.append(f"    s_lshl_b32 s3, s2, 2\n    s_add_u32 s3, s3, s{self.S_WAVE}\n    s_lshl_b32 s3, s3, 8")
            L.append("    v_mov_b32 v1, s3")
            L.append("    s_mov_b64 exec, 1")
            vals = [52, 54, 48] + [self.S_ST + 2 * i for i in range(self.nstamp)]
            for i, r in enumerate(vals):
                L.append(f"    v_mov_b32 v{2+i}, s{r}\n    buffer_store_dword v{2+i}, v1, s[44:47], 0 offen offset:{4*i}")
        L.append("L_end:")
        L.append("    s_endpgm")
        L.append('.section .rodata,"a"')
        L.append(".p2align 6")
        L.append(f".amdhsa_kernel {KN}")
        L.append("  .amdhsa_next_free_vgpr 512")
        L.append("  .amdhsa_next_free_sgpr 102")
        L.append("  .amdhsa_accum_offset 256")
        L.append("  .amdhsa_group_segment_fixed_size 0")
        L.append("  .amdhsa_kernarg_size 72")
        L.append("  .amdhsa_user_sgpr_count 2")
        L.append("  .amdhsa_user_sgpr_kernarg_segment_ptr 1")
        L.append("  .amdhsa_system_sgpr_workgroup_id_x 1")
        L.append(".end_amdhsa_kernel")
        return "\n".join(L) + "\n"


if __name__ == "__main__":
    cfg = json.loads(sys.argv[2]) if len(sys.argv) > 2 else {}
    g = Gen(cfg)
    txt = g.emit()
    open(sys.argv[1], "w").write(txt)
    ov = g.gap_report()
    print("instrs", len(g.S), "LDS", g.LDS, "over-budget gaps", len(ov), ov[:10], "nstamp", g.nstamp)
```

```python
import sys, json

KN = "standalone__batchnorm__sampling_kernel"
LOG2E = 1.4426950408889634


def f32bits(x):
    import struct
    return struct.unpack("<I", struct.pack("<f", x))[0]


class I:
    __slots__ = ("text", "kind", "defs", "uses", "tag", "target", "srcc")

    def __init__(self, text, kind, defs=(), uses=(), tag=None, target=None, srcc=()):
        self.text = text; self.kind = kind; self.defs = tuple(defs); self.uses = tuple(uses)
        self.tag = tag; self.target = target; self.srcc = tuple(srcc)


def regs(p, lo, n):
    return [f"{p}{lo+i}" for i in range(n)]


def rng(p, lo, n):
    return f"{p}[{lo}:{lo+n-1}]"


class Gen:
    def __init__(self, cfg):
        self.c = dict(G=8, NB1=6, NB2=6, lead=12, dma_gap=4, pro_w=2, stamps=0, store_aux="", x1_aux="", x2_aux="",
                      w_aux="", wring=11, tail=1, epi_per_step=2, prio=0, bar_lead=14)
        self.c.update(cfg)
        self.G = self.c["G"]
        assert self.G == 8
        self.XSLOT = 16896
        self.WBASE = 4 * self.XSLOT
        self.WRING = self.c["wring"]
        self.WWAVE = self.WRING * 2048
        self.LDS = self.WBASE + 4 * self.WWAVE
        assert self.LDS <= 163840
        self.ACC = 0
        self.XB = 80
        self.BN = 104
        self.V_XR1 = 120
        self.V_WR = 122
        self.V_XD1 = 123
        self.V_WD = 124
        self.V_XD2 = 126
        self.V_XR2 = 127
        self.V_OUT = 123
        self.V_T = [120, 121]
        self.V_PAR = 122
        self.S_P = 4
        self.SRD_X = 20; self.SRD_W = 24; self.SRD_O = 28
        self.S_WAVE = 32; self.S_WB = 33; self.S_X1B = 34; self.S_X2B = 35
        self.S_SO = 36
        self.S_SOX = 37
        self.S_L = 38
        self.S_O4 = 39
        self.S_T = 42
        self.S_DB = 50
        self.S_OB = 51
        self.S_ST = 56
        self.nstamp = 0

    def wfrag(self, kc, k, t):
        f = (kc * 3 + k) * 2 + t
        if f < 64:
            return ("a", 4 * f)
        return ("v", 128 + 4 * (f - 64))

    def acc(self, s, t):
        return self.ACC + (s % 10) * 8 + 4 * t

    def build_mfmas(self):
        G = self.G
        M = []
        frags = []
        self.interval_start = []
        for kc in range(16):
            if kc % 2 == 0:
                self.interval_start.append(len(M))
            fid = {}
            for j in range(G):
                fid[j] = len(frags); frags.append(dict(j=j, kc=kc, ph=1, iv=kc // 2))
            for s in range(G + 1):
                for t in range(2):
                    for k in range(3):
                        j = s + k - 1
                        if 0 <= j < G:
                            M.append(dict(s=s, t=t, k=k, kc=kc, fr=fid[j], j=j))
        self.ph1_end = len(M)
        sub = []
        for j in range(G, 16):
            taps = [k for k in (2, 1, 0) if 0 <= j + 1 - k < 16]
            sub.append((j, taps, 0))
        if self.c["tail"]:
            sub = [x for x in sub if x[0] < 14]
            sub += [(14, [2], 0), (14, [1], 0), (15, [2], 0), (14, [0], 0), (15, [1], 1)]
        seen = set()
        self.sub_start = []
        for (j, taps, split) in sub:
            if j not in seen:
                seen.add(j); self.interval_start.append(len(M))
            self.sub_start.append((j, taps, len(M)))
            if not split:
                for kp in range(8):
                    f = []
                    for kc in (2 * kp, 2 * kp + 1):
                        f.append(len(frags)); frags.append(dict(j=j, kc=kc, ph=2, iv=j))
                    for k in taps:
                        for t in range(2):
                            for u in range(2):
                                M.append(dict(s=j + 1 - k, t=t, k=k, kc=2 * kp + u, fr=f[u], j=j))
            else:
                f = []
                for kc in range(16):
                    f.append(len(frags)); frags.append(dict(j=j, kc=kc, ph=2, iv=j, hold=kc))
                for t in range(2):
                    for k in taps:
                        for kc in range(16):
                            M.append(dict(s=j + 1 - k, t=t, k=k, kc=kc, fr=f[kc], j=j))
        assert len(M) == 1472, len(M)
        self.M = M; self.frags = frags
        for i, m in enumerate(M):
            fr = frags[m["fr"]]
            fr.setdefault("first", i); fr["last"] = i
        self.acc_first = {}; self.acc_last = {}
        for i, m in enumerate(M):
            self.acc_first.setdefault((m["s"], m["t"]), i); self.acc_last[(m["s"], m["t"])] = i

    def gap_cost(self, lst):
        t = 4
        nv = [x for x in lst if x.kind not in ("valu", "trans")]
        vv = [x for x in lst if x.kind in ("valu", "trans")]
        for x in nv:
            t += 4
        for x in vv:
            t = max(t, 8) + (8 if x.kind == "trans" else 4)
        return t

    def place(self, ins, lo, hi=None, force=False):
        g = max(lo, 0)
        n = len(self.M)
        while g < n - 1:
            if force or self.gap_cost(self.gaps[g] + [ins]) <= 16:
                break
            g += 1
        if hi is not None and g > hi:
            raise Exception(f"cannot place {ins.text} in [{lo},{hi}]")
        g = min(g, n - 1)
        self.gaps[g].append(ins)
        return g

    def stamp(self):
        r = self.S_ST + 2 * self.nstamp
        self.nstamp += 1
        assert r + 1 < 102
        return I(f"s_memtime s[{r}:{r+1}]", "smem")

    def w_unit(self, u):
        kc, kk = divmod(u, 3)
        k = (1, 2, 0)[kk]
        aux = self.c["w_aux"]
        pos = (u % self.WRING) * 2048
        return [
            I(f"s_add_u32 m0, s{self.S_WB}, {pos}", "salu", defs=["m0"]),
            I(f"s_mov_b32 s{self.S_SO}, {k*524288 + kc*32768}", "salu", defs=[f"s{self.S_SO}"]),
            I(f"buffer_load_dwordx4 v{self.V_WD}, s[{self.SRD_W}:{self.SRD_W+3}], s{self.S_SO} offen {aux} lds", "dma",
              uses=["m0", f"v{self.V_WD}"], tag=("W", u, 0)),
            I(f"buffer_load_dwordx4 v{self.V_WD+1}, s[{self.SRD_W}:{self.SRD_W+3}], s{self.S_SO} offen offset:1024 {aux} lds", "dma",
              uses=["m0", f"v{self.V_WD+1}"], tag=("W", u, 1)),
        ]

    def x_slot(self, p):
        slot = (p % 4) * self.XSLOT
        out = []
        if p < 8:
            aux = self.c["x1_aux"]
            out.append(I(f"s_add_u32 m0, s{self.S_X1B}, {slot}", "salu", defs=["m0"]))
            out.append(I(f"s_mov_b32 s{self.S_SOX}, {p*128}", "salu", defs=[f"s{self.S_SOX}"]))
            for n in range(4):
                off = f"offset:{n*1024} " if n else ""
                out.append(I(f"buffer_load_dwordx4 v{self.V_XD1}, s[{self.SRD_X}:{self.SRD_X+3}], s{self.S_SOX} offen {off}{aux} lds",
                             "dma", uses=["m0", f"v{self.V_XD1}"], tag=("X", p, n)))
        else:
            aux = self.c["x2_aux"]
            out.append(I(f"s_add_u32 m0, s{self.S_X2B}, {slot}", "salu", defs=["m0"]))
            for n in range(4):
                off = f"offset:{n*1056} " if n else ""
                out.append(I(f"s_mov_b32 s{self.S_SOX}, {n*16384 - n*1056 + p*1024}", "salu", defs=[f"s{self.S_SOX}"]))
                out.append(I(f"buffer_load_dwordx4 v{self.V_XD2}, s[{self.SRD_X}:{self.SRD_X+3}], s{self.S_SOX} offen {off}{aux} lds",
                             "dma", uses=["m0", f"v{self.V_XD2}"], tag=("X", p, n)))
        return out

    def w_reads(self, u):
        kc, kk = divmod(u, 3)
        k = (1, 2, 0)[kk]
        pos = (u % self.WRING) * 2048
        out = []
        for t in range(2):
            p, r = self.wfrag(kc, k, t)
            for m in range(2):
                out.append(I(f"ds_read_b64_tr_b16 {rng(p, r+2*m, 2)}, v{self.V_WR} offset:{pos + 256*m + 8*t}", "ds",
                             defs=regs(p, r + 2 * m, 2), uses=[f"v{self.V_WR}"], tag=("WR", u, t, m)))
        return out

    def x_read(self, fi):
        fr = self.frags[fi]
        b = fr["buf"]
        slot = (fr["iv"] % 4) * self.XSLOT
        if fr["ph"] == 1:
            a = self.V_XR1 + (fr["kc"] & 1); off = slot + fr["j"] * 1024
        else:
            a = self.V_XR2; off = slot + fr["kc"] * 64
        return I(f"ds_read_b128 {rng('v', b, 4)}, v{a} offset:{off}", "ds", defs=regs("v", b, 4), uses=[f"v{a}"], tag=("XR", fi))

    def epi_pairs(self, s, vals, temps):
        groups = []
        L = f"s{self.S_L}"
        for pr in vals:
            a = [self.acc(s, t) + e for (t, e) in pr]
            sc = [self.BN + 4 * t + e for (t, e) in pr]
            sh = [self.BN + 8 + 4 * t + e for (t, e) in pr]
            T = temps[:len(pr)]
            groups.append([I(f"v_fma_f32 v{a[i]}, v{a[i]}, v{sc[i]}, v{sh[i]}", "valu", defs=[f"v{a[i]}"], uses=[f"v{a[i]}", f"v{sc[i]}", f"v{sh[i]}"]) for i in range(len(pr))])
            groups.append([I(f"v_exp_f32_e64 v{T[i]}, -v{a[i]}", "trans", defs=[f"v{T[i]}"], uses=[f"v{a[i]}"]) for i in range(len(pr))])
            groups.append([I(f"v_fma_f32 v{T[i]}, v{T[i]}, {L}, {L}", "valu", defs=[f"v{T[i]}"], uses=[f"v{T[i]}"]) for i in range(len(pr))])
            groups.append([I(f"v_rcp_f32_e32 v{T[i]}, v{T[i]}", "trans", defs=[f"v{T[i]}"], uses=[f"v{T[i]}"]) for i in range(len(pr))])
            groups.append([I(f"v_mul_f32_e32 v{a[i]}, v{a[i]}, v{T[i]}", "valu", defs=[f"v{a[i]}"], uses=[f"v{a[i]}", f"v{T[i]}"]) for i in range(len(pr))])
            cv = []
            for i in range(0, len(pr), 2):
                (t, e) = pr[i]
                d = self.acc(s, 0) + 2 * t + e // 2
                cv.append(I(f"v_cvt_pk_bf16_f32 v{d}, v{a[i]}, v{a[i+1]}", "valu", defs=[f"v{d}"], uses=[f"v{a[i]}", f"v{a[i+1]}"]))
            groups.append(cv)
        return groups

    def store(self, s):
        d = self.acc(s, 0)
        so = "0" if s < 4 else f"s{self.S_O4 + (s >> 2) - 1}"
        off = f"offset:{(s & 3) * 1024} " if s & 3 else ""
        return I(f"buffer_store_dwordx4 {rng('v', d, 4)}, v{self.V_OUT}, s[{self.SRD_O}:{self.SRD_O+3}], {so} offen {off}{self.c['store_aux']}",
                 "store", uses=regs("v", d, 4) + [f"v{self.V_OUT}"], tag=("ST", s))

    def schedule(self):
        c = self.c
        M = self.M; n = len(M)
        self.gaps = [[] for _ in range(n)]
        pro = []
        self.pro = pro
        lead = c["lead"]
        ring = 0
        last_user = {}
        holdregs = None
        for fi, fr in enumerate(self.frags):
            if "hold" in fr:
                pool = [self.ACC + 8 * q + 4 * h for q in (6, 7, 8, 9, 0, 1, 2) for h in range(2)] + [self.XB + 4 * q for q in range(6)]
                fr["buf"] = pool[fr["hold"]]
                if fr["buf"] < self.XB:
                    fr["prev_last"] = None; fr["accset"] = (fr["buf"] - self.ACC) // 8
                    continue
            else:
                nb = c["NB1"] if fr["ph"] == 1 else c["NB2"]
                fr["buf"] = self.XB + 4 * (ring % 6)
                ring += 1
            fr["prev_last"] = last_user.get(fr["buf"])
            last_user[fr["buf"]] = fr["last"]
        bar_gap = {}
        for p in range(1, 16):
            g = self.interval_start[p] - c["bar_lead"]
            w = I("WAITVM", "wait", target=("X", p, 3))
            b = I("s_barrier", "bar", tag=("BAR", p))
            while self.gap_cost(self.gaps[g] + [w, b]) > 16:
                g += 1
            self.gaps[g] += [w, b]
            bar_gap[p] = g
        self.bar_gap = bar_gap
        for fi, fr in enumerate(self.frags):
            if "hold" in fr:
                if fr["hold"] % 4 == 0:
                    self.gaps[fr["first"] - 1].insert(0, I("WAITLGKM", "wait", target=("XR", fi + 3)))
            elif fr["ph"] == 2:
                if fr["kc"] % 2 == 0:
                    self.gaps[fr["first"] - 1].insert(0, I("WAITLGKM", "wait", target=("XR", fi + 1)))
            elif fr["first"] > 0:
                self.gaps[fr["first"] - 1].insert(0, I("WAITLGKM", "wait", target=("XR", fi)))
        self.epi_done = {}
        tail = []
        self.tail = tail
        g = self.ph1_end + 2
        g0 = self.ph1_end
        rb = self.rebuild_out()
        for ins in rb:
            g0 = self.place(ins, g0) + 1
        g = g0
        steps = [x[2] for x in self.sub_start]
        pace = c["epi_per_step"]
        for s in range(16):
            lo = max(g, self.acc_last[(s, 0)] + 9)
            if s < 13 and pace:
                lo = max(lo, self.ph1_end + (s * 96) // pace + 2)
            if s == 15:
                break
            for t in range(2):
                lo = max(lo, self.acc_last[(s, t)] + 9)
                for grp in self.epi_pairs(s, [[(t, 0), (t, 1)], [(t, 2), (t, 3)]], self.V_T):
                    mx = lo
                    for ins in grp:
                        mx = self.place(ins, lo); lo = mx
                    lo = mx + 1
            gs = self.place(self.store(s), lo)
            self.epi_done[s] = gs
            g = gs
        s = 15
        lo = max(g, self.acc_last[(s, 0)] + 9)
        T4 = [self.XB + i for i in range(4)] if not c["tail"] else [self.acc(13, 0) + i for i in range(8)]
        if c["tail"]:
            lo = max(lo, self.epi_done[13] + 2)
            for grp in self.epi_pairs(s, [[(0, 0), (0, 1), (0, 2), (0, 3)]], T4[:4]):
                for ins in grp:
                    if lo < n - 1:
                        lo = self.place(ins, lo)
                        if lo == n - 1:
                            self.gaps[n - 1].remove(ins); tail.append(ins)
                    else:
                        tail.append(ins)
                if lo < n - 1:
                    lo += 1
            tail.append(I("PADMFMA", "pad"))
            for grp in self.epi_pairs(s, [[(1, 0), (1, 1), (1, 2), (1, 3)]], T4[4:8]):
                tail += grp
        else:
            tail.append(I("PADMFMA", "pad"))
            T8 = [self.XB + i for i in range(8)]
            for grp in self.epi_pairs(s, [[(t, e) for t in range(2) for e in range(4)]], T8):
                tail += grp
        tail.append(self.store(s))
        for s in range(10, 16):
            assert self.epi_done[s - 10] + 1 < min(self.acc_first[(s, 0)], self.acc_first[(s, 1)]), (s, self.epi_done[s - 10], self.acc_first[(s, 0)])
        cur = 0
        for fi, fr in enumerate(self.frags):
            rd = self.x_read(fi)
            lo = fr["first"] - lead
            if fr["prev_last"] is not None:
                lo = max(lo, fr["prev_last"])
            if "accset" in fr:
                q = fr["accset"]
                prev = q + 10 if q + 10 in self.epi_done else q
                lo = max(fr["first"] - 36, self.epi_done[prev] + 2)
            if fr["iv"] in bar_gap:
                lo = max(lo, bar_gap[fr["iv"]] + 1)
            if lo < 0:
                pro.append(rd); continue
            lo = max(lo, cur)
            cur = self.place(rd, lo, fr["first"] - 4 - (fr.get("hold", 0) % 4) - (fr["kc"] & 1 if fr["ph"] == 2 else 0))
            fr["rdgap"] = cur
        wr_gap = {}
        kc_start = [self.interval_start[k // 2] + (46 if k & 1 else 0) for k in range(16)]
        for u in range(48):
            kc, kk = divmod(u, 3)
            rds = self.w_reads(u)
            if kc == 0:
                continue
            lo = kc_start[kc - 1] + c.get("wr_off", 8) + 10 * kk
            lo = self.place(I("WAITVM", "wait", target=("W", u, 1)), lo)
            for r in rds:
                lo = self.place(r, lo, kc_start[kc] - 4)
                lo += c.get("wr_step", 1)
            wr_gap[u] = lo
        for kc in range(1, 16):
            self.gaps[kc_start[kc] - 1].insert(0, I("WAITLGKM", "wait", target=("WR", kc * 3 + 2, 1, 1)))
        todo = []
        npw = c["pro_w"]
        for u in range(3 * npw, 48):
            kc = u // 3
            need = kc_start[kc - 1] + c.get("wr_off", 8) + 10 * (u % 3)
            if u >= self.WRING:
                v = u - self.WRING
                if v >= 3:
                    free = min(fr["first"] for fr in self.frags if fr["ph"] == 1 and fr.get("rdgap", -1) >= wr_gap[v])
                    free = min(free, kc_start[v // 3])
                else:
                    free = 0
            else:
                free = 0
            todo.append((need, free, self.w_unit(u), ("W", u)))
        npx = c.get("pro_x", 1)
        for p in range(npx, 16):
            need = bar_gap[p]
            free = bar_gap[p - 2] + 1 if p >= 4 else 0
            todo.append((need, free, self.x_slot(p), ("X", p)))
        todo.sort(key=lambda x: x[0])
        cur = 0
        self.dma_gap = {}
        pend = list(todo)
        while pend:
            cand = [x for x in pend if x[1] <= cur]
            if not cand:
                cur = min(x[1] for x in pend); continue
            it = cand[0]; pend.remove(it)
            for ins in it[2]:
                cur = self.place(ins, cur)
                if ins.kind == "dma":
                    self.dma_gap[ins.tag] = cur
                    cur += c["dma_gap"]
            assert cur - c["dma_gap"] < it[0] - 4, (it[3], cur, it[0])
        self.place_bn(kc_start)
        P = []
        for u in range(3):
            P += self.w_unit(u)
        P += self.x_slot(0)
        for u in range(3, 3 * npw):
            P += self.w_unit(u)
        for p in range(1, npx):
            P += self.x_slot(p)
        if c["stamps"]: P.append(self.stamp())
        P.append(I("WAITVM", "wait", target=("W", 0, 1)))
        P += self.w_reads(0)
        P.append(I("WAITVM", "wait", target=("W", 1, 1)))
        P += self.w_reads(1)
        P.append(I("WAITVM", "wait", target=("W", 2, 1)))
        P += self.w_reads(2)
        P.append(I("WAITVM", "wait", target=("X", 0, 3)))
        if c["stamps"]: P.append(self.stamp())
        P.append(I("s_barrier", "bar", tag=("BAR", 0)))
        P += pro
        P.append(I("WAITLGKM", "wait", target=("XR", 0)))
        self.pro = P
        if c["stamps"]:
            P.append(self.stamp())
            for p in range(1, 16):
                self.gaps[self.interval_start[p] - 1].append(self.stamp())

    def rebuild_out(self):
        o = self.V_OUT; t = self.V_T[0]
        return [
            I(f"v_mbcnt_lo_u32_b32 v{t}, -1, 0", "valu", defs=[f"v{t}"]),
            I(f"v_mbcnt_hi_u32_b32 v{t}, -1, v{t}", "valu", defs=[f"v{t}"], uses=[f"v{t}"]),
            I(f"v_and_b32_e32 v{o}, 15, v{t}", "valu", defs=[f"v{o}"], uses=[f"v{t}"]),
            I(f"v_lshlrev_b32_e32 v{o}, 14, v{o}", "valu", defs=[f"v{o}"], uses=[f"v{o}"]),
            I(f"v_and_b32_e32 v{t}, 48, v{t}", "valu", defs=[f"v{t}"], uses=[f"v{t}"]),
            I(f"v_add3_u32 v{o}, v{o}, v{t}, s{self.S_T+7}", "valu", defs=[f"v{o}"], uses=[f"v{o}", f"v{t}"]),
        ]

    def place_bn(self, kc_start):
        T = self.ACC + 72
        A = self.BN + 15
        U = self.BN + 14
        sP = self.S_P
        g = kc_start[1] + 2
        seq = [
            I(f"v_mbcnt_lo_u32_b32 v{A}, -1, 0", "valu", defs=[f"v{A}"]),
            I(f"v_mbcnt_hi_u32_b32 v{A}, -1, v{A}", "valu", defs=[f"v{A}"], uses=[f"v{A}"]),
            I(f"v_and_b32_e32 v{A}, 48, v{A}", "valu", defs=[f"v{A}"], uses=[f"v{A}"]),
            I(f"v_add_u32_e32 v{A}, s{self.S_DB}, v{A}", "valu", defs=[f"v{A}"], uses=[f"v{A}"]),
            I(f"global_load_dwordx4 {rng('v', T, 4)}, v{A}, s[{sP+6}:{sP+7}]", "vload", defs=regs("v", T, 4), uses=[f"v{A}"], tag=("PV",)),
            I(f"global_load_dwordx4 {rng('v', T+4, 4)}, v{A}, s[{sP+8}:{sP+9}]", "vload", defs=regs("v", T + 4, 4), uses=[f"v{A}"], tag=("PG",)),
        ]
        for ins in seq:
            g = self.place(ins, g) + 1
        g = max(g, kc_start[4])
        g = self.place(I("WAITVM", "wait", target=("PG",)), g) + 1
        k1 = f32bits(1.0 / (LOG2E * LOG2E)); k2 = f32bits(1e-5 / (LOG2E * LOG2E))
        sK = self.S_T + 5
        g = self.place(I(f"s_mov_b32 s{sK}, {k1:#x}", "salu", defs=[f"s{sK}"]), g) + 1

        def unpack(d, src, i):
            if i & 1:
                return I(f"v_and_b32_e32 v{d}, 0xffff0000, v{src + i // 2}", "valu", defs=[f"v{d}"], uses=[f"v{src + i // 2}"])
            return I(f"v_lshlrev_b32_e32 v{d}, 16, v{src + i // 2}", "valu", defs=[f"v{d}"], uses=[f"v{src + i // 2}"])
        for i in range(8):
            d = self.BN + i
            for ins in [unpack(d, T, i),
                        I(f"v_mul_f32_e32 v{d}, s{sK}, v{d}", "valu", defs=[f"v{d}"], uses=[f"v{d}"]),
                        I(f"v_add_f32_e32 v{d}, {k2:#x}, v{d}", "valu", defs=[f"v{d}"], uses=[f"v{d}"]),
                        I(f"v_rsq_f32_e32 v{d}, v{d}", "trans", defs=[f"v{d}"], uses=[f"v{d}"]),
                        unpack(U, T + 4, i),
                        I(f"v_mul_f32_e32 v{d}, v{d}, v{U}", "valu", defs=[f"v{d}"], uses=[f"v{d}", f"v{U}"])]:
                g = self.place(ins, g) + 1
        for ins in [
            I(f"global_load_dwordx4 {rng('v', T, 4)}, v{A}, s[{sP+4}:{sP+5}]", "vload", defs=regs("v", T, 4), uses=[f"v{A}"], tag=("PM",)),
            I(f"global_load_dwordx4 {rng('v', T+4, 4)}, v{A}, s[{sP+10}:{sP+11}]", "vload", defs=regs("v", T + 4, 4), uses=[f"v{A}"], tag=("PB",)),
        ]:
            g = self.place(ins, g) + 1
        g = max(g + 100, kc_start[9])
        g = self.place(I("WAITVM", "wait", target=("PB",)), g) + 1
        for i in range(8):
            d = self.BN + 8 + i
            u = U if i < 6 else T + (i - 6)
            for ins in [unpack(d, T + 4, i),
                        I(f"v_mul_f32_e32 v{d}, s{self.S_L}, v{d}", "valu", defs=[f"v{d}"], uses=[f"v{d}"]),
                        unpack(u, T, i),
                        I(f"v_fma_f32 v{d}, -v{u}, v{self.BN+i}, v{d}", "valu", defs=[f"v{d}"], uses=[f"v{u}", f"v{self.BN+i}", f"v{d}"])]:
                g = self.place(ins, g) + 1
        assert g < self.ph1_end - 2, g

    def entry(self):
        c = self.c
        E = []
        e = lambda t, k="salu", d=(), u=(): E.append(I(t, k, defs=d, uses=u))
        if c["stamps"]:
            E.append(self.stamp())
            E.append(I("s_memrealtime s[52:53]", "smem"))
        e("s_cmp_ge_u32 s2, 256")
        e("s_cbranch_scc1 L_end")
        e(f"s_load_dwordx16 s[{self.S_P}:{self.S_P+15}], s[0:1], 0", "smem")
        T = self.S_T
        e("v_lshrrev_b32_e32 v1, 6, v0", "valu", ["v1"], ["v0"])
        e("v_and_b32_e32 v0, 63, v0", "valu", ["v0"], ["v0"])
        e(f"v_readfirstlane_b32 s{self.S_WAVE}, v1", "valu", [f"s{self.S_WAVE}"], ["v1"])
        if c.get("map", 0) == 0:
            e(f"s_and_b32 s{T}, s2, 7")
            e(f"s_lshl_b32 s{T}, s{T}, 3")
            e(f"s_lshr_b32 s{T+1}, s2, 5")
            e(f"s_add_u32 s{T}, s{T}, s{T+1}")
            e(f"s_lshl_b32 s{self.S_OB}, s{T}, 18")
            e(f"s_lshr_b32 s{T+1}, s2, 3")
            e(f"s_and_b32 s{T+1}, s{T+1}, 3")
        else:
            e(f"s_lshr_b32 s{T}, s2, 2")
            e(f"s_lshl_b32 s{self.S_OB}, s{T}, 18")
            e(f"s_and_b32 s{T+1}, s2, 3")
        e(f"s_lshl_b32 s{T+1}, s{T+1}, 8")
        e(f"s_lshl_b32 s{T+2}, s{self.S_WAVE}, 6")
        e(f"s_add_u32 s{self.S_DB}, s{T+1}, s{T+2}")
        e(f"s_add_u32 s{T+7}, s{self.S_DB}, s{self.S_OB}")
        wd = self.V_WD
        e(f"v_lshrrev_b32_e32 v1, 2, v0", "valu", ["v1"], ["v0"])
        e(f"v_lshlrev_b32_e32 v1, 10, v1", "valu", ["v1"], ["v1"])
        e(f"v_and_b32_e32 v2, 3, v0", "valu", ["v2"], ["v0"])
        e(f"v_lshlrev_b32_e32 v2, 4, v2", "valu", ["v2"], ["v2"])
        e(f"v_add3_u32 v{wd}, v1, v2, s{self.S_DB}", "valu", [f"v{wd}"], ["v1", "v2"])
        e(f"v_add_u32_e32 v{wd+1}, {16384-1024}, v{wd}", "valu", [f"v{wd+1}"], [f"v{wd}"])
        e(f"s_mul_i32 s{self.S_WB}, s{self.S_WAVE}, {self.WWAVE}")
        e(f"s_add_u32 s{self.S_WB}, s{self.S_WB}, {self.WBASE}")
        xd = self.V_XD1
        e(f"s_and_b32 s{T+3}, s{self.S_WAVE}, 1")
        e(f"s_lshr_b32 s{T+4}, s{self.S_WAVE}, 1")
        e(f"s_lshl_b32 s{T+5}, s{T+3}, 13")
        e(f"s_lshl_b32 s{T+6}, s{T+4}, 12")
        e(f"s_add_u32 s{self.S_X1B}, s{T+5}, s{T+6}")
        e(f"s_lshl_b32 s{T+5}, s{T+3}, 3")
        e(f"v_lshrrev_b32_e32 v1, 3, v0", "valu", ["v1"], ["v0"])
        e(f"v_add_u32_e32 v1, s{T+5}, v1", "valu", ["v1"], ["v1"])
        e(f"v_lshrrev_b32_e32 v2, 1, v1", "valu", ["v2"], ["v1"])
        e(f"v_xor_b32_e32 v2, v2, v0", "valu", ["v2"], ["v2", "v0"])
        e(f"v_and_b32_e32 v2, 7, v2", "valu", ["v2"], ["v2"])
        e(f"v_lshlrev_b32_e32 v2, 4, v2", "valu", ["v2"], ["v2"])
        e(f"v_lshlrev_b32_e32 v1, 14, v1", "valu", ["v1"], ["v1"])
        e(f"s_add_u32 s{T+6}, s{T+6}, s{self.S_OB}")
        e(f"v_add3_u32 v{xd}, v1, v2, s{T+6}", "valu", [f"v{xd}"], ["v1", "v2"])
        self.entry_split = len(E)
        e(f"s_lshl_b32 s{T+5}, s{self.S_WAVE}, 16")
        e(f"s_add_u32 s{T+5}, s{T+5}, s{self.S_OB}")
        e(f"v_lshlrev_b32_e32 v1, 4, v0", "valu", ["v1"], ["v0"])
        e(f"v_add_u32_e32 v{self.V_XD2}, s{T+5}, v1", "valu", [f"v{self.V_XD2}"], ["v1"])
        e(f"s_mul_i32 s{self.S_X2B}, s{self.S_WAVE}, {4*1056}")
        e(f"v_and_b32_e32 v1, 15, v0", "valu", ["v1"], ["v0"])
        e(f"v_lshrrev_b32_e32 v2, 4, v0", "valu", ["v2"], ["v0"])
        e(f"v_mul_u32_u24_e32 v3, 1056, v1", "valu", ["v3"], ["v1"])
        e(f"v_lshl_add_u32 v{self.V_XR2}, v2, 4, v3", "valu", [f"v{self.V_XR2}"], ["v2", "v3"])
        e(f"v_lshrrev_b32_e32 v3, 1, v1", "valu", ["v3"], ["v1"])
        e(f"v_xor_b32_e32 v3, v3, v2", "valu", ["v3"], ["v3", "v2"])
        e(f"v_lshlrev_b32_e32 v3, 4, v3", "valu", ["v3"], ["v3"])
        e(f"v_and_b32_e32 v4, 7, v1", "valu", ["v4"], ["v1"])
        e(f"v_lshl_add_u32 v3, v4, 7, v3", "valu", ["v3"], ["v4", "v3"])
        e(f"v_lshrrev_b32_e32 v4, 3, v1", "valu", ["v4"], ["v1"])
        e(f"v_lshl_add_u32 v{self.V_XR1}, v4, 13, v3", "valu", [f"v{self.V_XR1}"], ["v4", "v3"])
        e(f"v_xor_b32_e32 v{self.V_XR1+1}, 64, v{self.V_XR1}", "valu", [f"v{self.V_XR1+1}"], [f"v{self.V_XR1}"])
        e(f"v_and_b32_e32 v3, 15, v0", "valu", ["v3"], ["v0"])
        e(f"v_lshlrev_b32_e32 v3, 4, v3", "valu", ["v3"], ["v3"])
        e(f"v_lshl_add_u32 v3, v2, 9, v3", "valu", ["v3"], ["v2", "v3"])
        e(f"v_add_u32_e32 v{self.V_WR}, s{self.S_WB}, v3", "valu", [f"v{self.V_WR}"], ["v3"])
        e(f"s_mov_b32 s{self.S_L}, {f32bits(LOG2E):#x}")
        for i in range(3):
            e(f"s_movk_i32 s{self.S_O4+i}, {4096*(i+1)}")
        sP = self.S_P
        e(f"s_mov_b32 s{self.SRD_O}, s{sP+12}")
        e(f"s_and_b32 s{self.SRD_O+1}, s{sP+13}, 0xffff")
        e(f"s_mov_b32 s{self.SRD_O+2}, 0x1000000")
        e(f"s_mov_b32 s{self.SRD_O+3}, 0x20000")
        late = E[self.entry_split:]
        E = E[:self.entry_split]
        E.append(I(f"s_mov_b32 s{self.SRD_W+2}, 0x180000", "salu"))
        E.append(I(f"s_mov_b32 s{self.SRD_W+3}, 0x20000", "salu"))
        E.append(I(f"s_mov_b32 s{self.SRD_X+2}, 0x1000000", "salu"))
        E.append(I(f"s_mov_b32 s{self.SRD_X+3}, 0x20000", "salu"))
        E.append(I("s_waitcnt lgkmcnt(0)", "rawwait"))
        if c["stamps"]:
            E.append(self.stamp())
        E.append(I(f"s_mov_b32 s{self.SRD_W}, s{sP+2}", "salu"))
        E.append(I(f"s_and_b32 s{self.SRD_W+1}, s{sP+3}, 0xffff", "salu"))
        E.append(I(f"s_mov_b32 s{self.SRD_X}, s{sP}", "salu"))
        E.append(I(f"s_and_b32 s{self.SRD_X+1}, s{sP+1}, 0xffff", "salu"))
        return E, late

    def linearise(self):
        c = self.c
        E, late = self.entry()
        self.build_mfmas()
        self.schedule()
        P = self.pro
        k = max(i for i, x in enumerate(P) if x.kind == "dma") + 1
        S = E + P[:k] + late + P[k:]
        for i, m in enumerate(self.M):
            s, t = m["s"], m["t"]
            a = self.acc(s, t)
            wp, wr = self.wfrag(m["kc"], m["k"], t)
            xb = self.frags[m["fr"]]["buf"]
            first = self.acc_first[(s, t)] == i
            cc = "0" if first else rng("v", a, 4)
            S.append(I(f"v_mfma_f32_16x16x32_bf16 {rng('v', a, 4)}, {rng(wp, wr, 4)}, {rng('v', xb, 4)}, {cc}", "mfma",
                       defs=regs("v", a, 4), uses=regs(wp, wr, 4) + regs("v", xb, 4) + ([] if first else regs("v", a, 4)),
                       srcc=[] if first else regs("v", a, 4)))
            gp = self.gaps[i]
            S += [x for x in gp if x.kind not in ("valu", "trans")] + [x for x in gp if x.kind in ("valu", "trans")]
        S += self.tail
        out = []
        vm = []
        vm_done = 0
        lg = []; lg_done = 0
        for x in S:
            if x.kind in ("dma", "store", "vload"):
                vm.append(x.tag)
            elif x.kind == "ds":
                lg.append(x.tag)
            if x.text == "WAITVM":
                idx = vm.index(x.target) + 1
                if idx <= vm_done:
                    continue
                nn = len(vm) - idx
                assert nn <= 63
                vm_done = idx
                out.append(I(f"s_waitcnt vmcnt({nn})", "wait", tag=("vm", x.target)))
            elif x.text == "WAITLGKM":
                idx = lg.index(x.target) + 1
                if idx <= lg_done:
                    continue
                nn = len(lg) - idx
                if nn > 15:
                    nn = 15; idx = len(lg) - 15
                lg_done = idx
                out.append(I(f"s_waitcnt lgkmcnt({nn})", "wait", tag=("lg", x.target)))
            elif x.text == "PADMFMA":
                out.append(I("s_nop 7", "nop"))
            else:
                out.append(x)
        self.S = out
        return out

    def check(self):
        S = self.S
        pend = {}
        lg = []; vm = []
        lg_done = vm_done = 0
        last_def = {}
        last_srcc = {}
        last_store = {}
        pos = 0
        import re
        wr_idx = {}; xr_idx = {}
        bar_seen = {}
        vm_idx = {}
        for x in S:
            st = 1
            if x.kind == "nop":
                st = int(x.text.split()[1]) + 1
            if x.kind == "wait":
                mm = re.match(r"s_waitcnt (\w+)\((\d+)\)", x.text)
                if mm.group(1) == "vmcnt": vm_done = max(vm_done, len(vm) - int(mm.group(2)))
                else: lg_done = max(lg_done, len(lg) - int(mm.group(2)))
            for r in x.uses + x.defs:
                if r in pend:
                    q, i = pend[r]
                    if (q == "lg" and i > lg_done) or (q == "vm" and i > vm_done):
                        raise Exception(f"use of pending {r} in {x.text}")
                    del pend[r]
            for r in x.uses:
                if r in last_def:
                    p, k = last_def[r]
                    d = pos - p - 1
                    need = 0
                    if k == "mfma":
                        if x.kind == "mfma": need = 0 if r in x.srcc else 8
                        else: need = 8
                    elif k in ("valu", "trans"):
                        if x.kind == "mfma": need = 2
                        elif k == "trans" and x.kind in ("valu",): need = 1
                        if r.startswith("s") and x.kind in ("dma", "store", "vload"): need = 5
                        if "readfirstlane" in x.text: need = 1
                    elif k == "salu" and r == "m0": need = 1
                    if d < need:
                        raise Exception(f"hazard RAW {r}: {k} -> {x.text} dist {d} < {need}")
            for r in x.defs:
                if r in last_def and last_def[r][1] == "mfma" and not (x.kind == "mfma" and r in x.srcc):
                    d = pos - last_def[r][0] - 1
                    if d < 8: raise Exception(f"hazard WAW {r}: mfma -> {x.text} dist {d}")
                if r in last_srcc and x.kind in ("valu", "trans") and pos - last_srcc[r] - 1 < 3:
                    raise Exception(f"hazard WAR srcc {r}: {x.text}")
                if r in last_store and pos - last_store[r] - 1 < 2:
                    raise Exception(f"hazard WAR store {r}: {x.text}")
            if x.kind == "ds":
                lg.append(x.tag)
                for r in x.defs: pend[r] = ("lg", len(lg))
                if x.tag[0] == "WR":
                    wr_idx[x.tag[1]] = len(lg)
                    assert vm_idx[("W", x.tag[1], 1)] <= vm_done, ("W not landed", x.tag)
                else:
                    fr = self.frags[x.tag[1]]
                    xr_idx[fr["iv"]] = len(lg)
                    assert fr["iv"] in bar_seen, ("X read before barrier", x.tag)
            elif x.kind in ("dma", "store", "vload"):
                vm.append(x.tag); vm_idx[x.tag] = len(vm)
                for r in x.defs: pend[r] = ("vm", len(vm))
                if x.kind == "dma" and x.tag[0] == "W" and x.tag[1] >= self.WRING:
                    assert wr_idx[x.tag[1] - self.WRING] <= lg_done, ("W slot overwritten early", x.tag)
                if x.kind == "dma" and x.tag[0] == "X" and x.tag[1] >= 4:
                    p = x.tag[1]
                    ok = any(lgd >= xr_final[p - 4] for (q, lgd) in bar_seen.items())
                    assert ok, ("X slot overwritten early", x.tag)
                if x.kind == "store":
                    for r in x.uses: last_store[r] = pos
            elif x.kind == "bar":
                p = x.tag[1]
                assert vm_idx[("X", p, 3)] <= vm_done, ("barrier before X landed", p)
                bar_seen[p] = lg_done
                if p == 0:
                    xr_final = {}; cnt = 0
                    for y in S:
                        if y.kind == "ds":
                            cnt += 1
                            if y.tag[0] == "XR": xr_final[self.frags[y.tag[1]]["iv"]] = cnt
            for r in x.defs:
                last_def[r] = (pos + st - 1, x.kind)
            for r in x.srcc:
                last_srcc[r] = pos
            pos += st
        over = 0
        for g, lst in enumerate(self.gaps):
            pass
        return True

    def gap_report(self):
        S = self.S
        cur = None; over = []; n = 0
        for x in S:
            if x.kind == "mfma":
                if cur is not None and self.gap_cost(cur) > 16: over.append((n - 1, self.gap_cost(cur)))
                cur = []; n += 1
            elif cur is not None:
                cur.append(x)
        return over

    def emit(self):
        c = self.c
        S = self.linearise()
        self.check()
        L = []
        L.append(f"; @launch grid=(256,1,1) block=(256,1,1) lds={self.LDS}")
        L.append('.amdgcn_target "amdgcn-amd-amdhsa--gfx950"')
        L.append(".text")
        L.append(f".globl {KN}")
        L.append(".p2align 8")
        L.append(f".type {KN},@function")
        L.append(f"{KN}:")
        for x in S:
            L.append("    " + " ".join(x.text.split()))
        if c["stamps"]:
            L.append("    " + self.stamp().text)
            L.append("    s_waitcnt vmcnt(0)")
            L.append("    " + self.stamp().text)
            L.append("    s_memrealtime s[54:55]")
            L.append("    s_load_dwordx2 s[44:45], s[0:1], 64")
            L.append("    s_getreg_b32 s48, hwreg(HW_REG_XCC_ID)")
            L.append("    s_waitcnt lgkmcnt(0)")
            L.append("    s_mov_b32 s46, 0x1000000\n    s_mov_b32 s47, 0x20000")
            L.append(f"    s_lshl_b32 s3, s2, 2\n    s_add_u32 s3, s3, s{self.S_WAVE}\n    s_lshl_b32 s3, s3, 8")
            L.append("    v_mov_b32 v1, s3")
            L.append("    s_mov_b64 exec, 1")
            vals = [52, 54, 48] + [self.S_ST + 2 * i for i in range(self.nstamp)]
            for i, r in enumerate(vals):
                L.append(f"    v_mov_b32 v{2+i}, s{r}\n    buffer_store_dword v{2+i}, v1, s[44:47], 0 offen offset:{4*i}")
        L.append("L_end:")
        L.append("    s_endpgm")
        L.append('.section .rodata,"a"')
        L.append(".p2align 6")
        L.append(f".amdhsa_kernel {KN}")
        L.append("  .amdhsa_next_free_vgpr 512")
        L.append("  .amdhsa_next_free_sgpr 102")
        L.append("  .amdhsa_accum_offset 256")
        L.append("  .amdhsa_group_segment_fixed_size 0")
        L.append("  .amdhsa_kernarg_size 72")
        L.append("  .amdhsa_user_sgpr_count 2")
        L.append("  .amdhsa_user_sgpr_kernarg_segment_ptr 1")
        L.append("  .amdhsa_system_sgpr_workgroup_id_x 1")
        L.append(".end_amdhsa_kernel")
        return "\n".join(L) + "\n"


if __name__ == "__main__":
    cfg = json.loads(sys.argv[2]) if len(sys.argv) > 2 else {}
    g = Gen(cfg)
    txt = g.emit()
    open(sys.argv[1], "w").write(txt)
    ov = g.gap_report()
    print("instrs", len(g.S), "LDS", g.LDS, "over-budget gaps", len(ov), ov[:10], "nstamp", g.nstamp)
```
